```python
import torch

def _softmax(x, axis=-1):
    return torch.softmax(x, dim=axis)
def _gelu(x):
    return torch.nn.functional.gelu(x, approximate="tanh")
def _silu(x):
    return torch.nn.functional.silu(x)
def _sigmoid(x):
    return torch.sigmoid(x)
def _layernorm(x, axis=-1, eps=1e-5):
    m = x.mean(dim=axis, keepdim=True)
    v = x.var(dim=axis, keepdim=True, unbiased=False)
    return (x - m) / torch.sqrt(v + eps)
def _scatter_add(tgt, idx, src, axis=0):
    return tgt.clone().index_add_(axis, idx, src)
def _segment_sum(src, seg, n):
    out = torch.zeros((n,) + src.shape[1:], dtype=src.dtype)
    return out.index_add_(0, seg, src)
def _pad(x, pw):
    flat = tuple(v for pair in reversed(pw) for v in pair)
    return torch.nn.functional.pad(x, flat)

kernel_name = 'interleave_layers__compressed_kv_cla__glu_gated_swiglu__decode'

def setup_inputs():

    _w = (lambda a: (lambda t: t.to(torch.bfloat16) if t.is_floating_point() else t)(torch.as_tensor(a)))
    def _A_setup():
        B, H, Sq, Sk, D, M = 2, 32, 1, 8192, 128, 512
        Dc = 4 * D
        return {
            "x": _w((lambda *s: torch.randn(*s, dtype=torch.bfloat16) * 0.05)(B, Sq, M)),
            "c_kv": _w((lambda *s: torch.randn(*s, dtype=torch.bfloat16) * 0.8)(B, Sk, Dc)),
            "w_q": _w((lambda *s: torch.randn(*s, dtype=torch.bfloat16) * 1.6)(M, H, D) * (M ** -0.5)),
            "w_uk": _w((lambda *s: torch.randn(*s, dtype=torch.bfloat16) * 1.6)(Dc, H, D) * (Dc ** -0.5)),
            "w_uv": _w((lambda *s: torch.randn(*s, dtype=torch.bfloat16) * 0.8)(Dc, H, D) * (Dc ** -0.5)),
            "w_o": _w((lambda *s: torch.randn(*s, dtype=torch.bfloat16) * 0.8)(H, D, M) * ((H * D) ** -0.5)),
        }
    _A_in = _A_setup()

    def _B_setup():
        B, S, D, F = 2, 1, 512, 1792
        return {
            "x": _w((lambda *s: torch.randn(*s, dtype=torch.bfloat16) * 0.05)(B, S, D)),
            "w1": _w((lambda *s: torch.randn(*s, dtype=torch.bfloat16) * 0.4)(D, F) * (2.0 / D) ** 0.5),
            "w3": _w((lambda *s: torch.randn(*s, dtype=torch.bfloat16) * 0.4)(D, F) * (2.0 / D) ** 0.5),
            "w2": _w((lambda *s: torch.randn(*s, dtype=torch.bfloat16) * 0.4)(F, D) * (2.0 / F) ** 0.5),
        }
    _B_in = _B_setup()

    return {
        "A_x": _A_in["x"],
        "A_c_kv": _A_in["c_kv"],
        "A_w_q": _A_in["w_q"],
        "A_w_uk": _A_in["w_uk"],
        "A_w_uv": _A_in["w_uv"],
        "A_w_o": _A_in["w_o"],
        "B_x": _B_in["x"],
        "B_w1": _B_in["w1"],
        "B_w3": _B_in["w3"],
        "B_w2": _B_in["w2"],
    }

def reference(A_x, A_c_kv, A_w_q, A_w_uk, A_w_uv, A_w_o, B_x, B_w1, B_w3, B_w2):
    def _A_ref(x, c_kv, w_q, w_uk, w_uv, w_o):
        B, Sq, M = x.shape[0], x.shape[1], x.shape[2]
        Sk = c_kv.shape[1]
        H, D = w_q.shape[1], w_q.shape[2]
        q = torch.einsum("bqm,mhd->bhqd", x, w_q)
        k = torch.einsum("bkc,chd->bhkd", c_kv, w_uk)
        v = torch.einsum("bkc,chd->bhkd", c_kv, w_uv)
        scores = torch.einsum("bhqd,bhkd->bhqk", q, k) * (D ** -0.5)
        off = Sk - Sq
        qi = torch.arange(Sq)[:, None]
        kj = torch.arange(Sk)[None, :]
        cmask = kj <= (qi + off)
        scores = torch.where(cmask[None, None], scores, -1e9)
        p = _softmax(scores, axis=-1)
        ctx = torch.einsum("bhqk,bhkd->bhqd", p, v)
        return torch.einsum("bhqd,hdm->bqm", ctx, w_o)

    def _B_ref(x, w1, w3, w2):
        gate = torch.einsum("bsd,df->bsf", x, w1)
        up = torch.einsum("bsd,df->bsf", x, w3)
        h = _silu(gate) * up
        out = torch.einsum("bsf,fd->bsd", h, w2)
        return out

    x = A_x
    x = x + _A_ref(_layernorm(x, axis=-1), A_c_kv, A_w_q, A_w_uk, A_w_uv, A_w_o)
    x = x + _B_ref(_layernorm(x, axis=-1), B_w1, B_w3, B_w2)
    x = x + _A_ref(_layernorm(x, axis=-1), A_c_kv, A_w_q, A_w_uk, A_w_uv, A_w_o)
    x = x + _B_ref(_layernorm(x, axis=-1), B_w1, B_w3, B_w2)
    return x
```

```python
import re

REG_RE = re.compile(r'\b([vas])(\d+)\b|\b([vas])\[(\d+):(\d+)\]|\b(vcc|exec|m0|scc)\b')


def regs_of(text):
    out = set()
    for m in REG_RE.finditer(text):
        if m.group(1):
            out.add((m.group(1), int(m.group(2))))
        elif m.group(3):
            for i in range(int(m.group(4)), int(m.group(5)) + 1):
                out.add((m.group(3), i))
        else:
            out.add((m.group(6), 0))
    return out


def split_ops(s):
    ops, depth, cur = [], 0, ''
    for ch in s:
        if ch == '[':
            depth += 1
        if ch == ']':
            depth -= 1
        if ch == ',' and depth == 0:
            ops.append(cur.strip())
            cur = ''
        else:
            cur += ch
    if cur.strip():
        ops.append(cur.strip())
    return ops


TRANS = ('v_exp_f32', 'v_log_f32', 'v_rcp_f32', 'v_rsq_f32', 'v_sqrt_f32')


class Ins:
    pass


def classify(line):
    t = line.strip()
    mn, _, rest = t.partition(' ')
    I = Ins()
    I.mn = mn
    I.text = t
    I.w = set()
    I.r = set()
    I.kind = 'other'
    I.dpp = False
    I.passes = 0
    I.srcc = set()
    I.ab = set()
    I.widestore = set()
    I.lanesel = set()
    I.ldsdma = False
    ops = split_ops(rest)
    if mn.startswith('v_mfma'):
        I.kind = 'mfma'
        I.passes = 8 if '32x32' in mn else 4
        I.w = regs_of(ops[0])
        I.ab = regs_of(ops[1]) | regs_of(ops[2])
        I.srcc = regs_of(ops[3].split()[0])
        I.r = I.ab | I.srcc
    elif mn.startswith('v_'):
        I.kind = 'valu'
        last = ops[-1]
        if 'row_' in t or 'quad_perm' in t or '_dpp' in mn:
            I.dpp = True
        if mn.startswith('v_cmp'):
            I.w = regs_of(ops[0])
            for o in ops[1:]:
                I.r |= regs_of(o)
        elif mn.startswith('v_permlane'):
            I.w = regs_of(ops[0]) | regs_of(ops[1])
            I.r = set(I.w)
            I.kind = 'permlane'
        else:
            I.w = regs_of(ops[0])
            for o in ops[1:]:
                I.r |= regs_of(o.split(' row_')[0] if ' row_' in o else o)
            if mn.startswith('v_fmac') or I.dpp:
                I.r |= I.w
            if mn.startswith('v_cndmask') and len(ops) == 3:
                I.r.add(('vcc', 0))
            if mn in ('v_readlane_b32', 'v_writelane_b32'):
                I.lanesel = regs_of(ops[2])
            if mn.startswith('v_add_co') or mn.startswith('v_addc_co'):
                I.w |= regs_of(ops[1])
        if mn in TRANS:
            I.trans = True
        else:
            I.trans = False
    elif mn.startswith('buffer_load') or mn.startswith('global_load'):
        I.kind = 'vload'
        if ' lds' in t:
            I.ldsdma = True
            for o in ops:
                I.r |= regs_of(o)
            I.r.add(('m0', 0))
        else:
            I.w = regs_of(ops[0])
            for o in ops[1:]:
                I.r |= regs_of(o)
    elif mn.startswith('buffer_store') or mn.startswith('global_store'):
        I.kind = 'vstore'
        for o in ops:
            I.r |= regs_of(o)
        if 'x3' in mn or 'x4' in mn:
            I.widestore = regs_of(ops[0])
    elif mn.startswith('ds_read') or mn.startswith('ds_bpermute'):
        I.kind = 'dsread'
        I.w = regs_of(ops[0])
        for o in ops[1:]:
            I.r |= regs_of(o)
    elif mn.startswith('ds_write'):
        I.kind = 'dswrite'
        for o in ops:
            I.r |= regs_of(o)
    elif mn.startswith('s_'):
        I.kind = 'salu'
        if mn in ('s_nop', 's_waitcnt', 's_barrier', 's_endpgm', 's_sleep', 's_setprio') or mn.startswith('s_cbranch') or mn == 's_branch' or mn.startswith('s_cmp'):
            for o in ops:
                I.r |= regs_of(o)
        else:
            if ops:
                I.w = regs_of(ops[0])
            for o in ops[1:]:
                I.r |= regs_of(o)
            if 'saveexec' in mn:
                I.w.add(('exec', 0))
    if not hasattr(I, 'trans'):
        I.trans = False
    return I


def isvalu(I):
    return I.kind in ('valu', 'permlane')


class Asm:
    def __init__(self):
        self.lines = []
        self.hist = []
        self.nlabel = 0

    def label(self, base='L'):
        self.nlabel += 1
        return '%s_%d' % (base, self.nlabel)

    def raw(self, text):
        self.lines.append(text)

    def place(self, lab):
        self.lines.append(lab + ':')

    def comment(self, c):
        self.lines.append('    ; ' + c)

    def need(self, I):
        req = 0
        age = 0
        for P, st in reversed(self.hist):
            def want(n):
                nonlocal req
                if n - age > req:
                    req = n - age
            vw = {x for x in P.w if x[0] in 'va'}
            sw = {x for x in P.w if x[0] in ('s', 'vcc')}
            if isvalu(P):
                if I.dpp and (vw & I.r):
                    want(2)
                if I.mn in ('v_readlane_b32', 'v_readfirstlane_b32') and (vw & I.r):
                    want(1)
                if I.kind == 'permlane' and (vw & I.r):
                    want(2)
                if I.kind == 'mfma' and (vw & I.r):
                    want(2)
                if P.trans and (vw & I.r) and I.kind != 'salu':
                    want(1)
                if sw:
                    if (isvalu(I) or I.kind == 'mfma') and (sw & I.r):
                        want(2)
                    if sw & I.lanesel:
                        want(4)
                    if I.kind in ('vload', 'vstore') and (sw & I.r):
                        want(5)
                    if I.kind == 'salu' and (sw & I.r):
                        want(1)
            if P.kind == 'mfma':
                big = 12 if P.passes == 8 else 8
                if I.kind == 'mfma':
                    if P.w & I.ab:
                        want(big)
                    if P.w & I.srcc:
                        if not (P.w == I.srcc and P.passes == I.passes):
                            want(10 if P.passes == 8 else 6)
                    elif P.w & I.w:
                        want(big)
                elif I.kind != 'salu':
                    if (P.w & I.r) or (P.w & I.w):
                        want(big)
                if isvalu(I) and (P.srcc & I.w):
                    want(7 if P.passes == 8 else 3)
            if P.widestore and (P.widestore & I.w):
                want(2 if isvalu(I) else 1)
            if P.kind == 'salu' and ('m0', 0) in P.w and I.ldsdma:
                want(1)
            age += st
            if age > 24:
                break
        return req

    def emit(self, text):
        if '\n' in text:
            for l in text.split('\n'):
                if l.strip():
                    self.emit(l)
            return
        t = text.split(';')[0].strip()
        if not t:
            return
        I = classify(t)
        n = self.need(I)
        while n > 0:
            k = min(n, 16)
            self.lines.append('    s_nop %d' % (k - 1))
            N = classify('s_nop %d' % (k - 1))
            self.hist.append((N, k))
            n -= k
        self.lines.append('    ' + text.strip())
        st = 1
        if I.mn == 's_nop':
            st = int(t.split()[1]) + 1
        self.hist.append((I, st))
        if len(self.hist) > 64:
            self.hist = self.hist[-64:]

    __call__ = emit

    def text(self):
        return '\n'.join(self.lines) + '\n'
```

```python
import sys, os
sys.path.insert(0, os.path.dirname(os.path.abspath(__file__)))
from asmlib import Asm

KNAME = 'interleave_layers__compressed_kv_cla__glu_gated_swiglu__decode_kernel'

QP = 0x000000
QA = 0x020000
ST = 0x030000
XS = 0x040000
XO = 0x050000
XP = 0x0D0000
XP2 = 0x0E0000
CP = 0x100000
PO = 0x200000
PO2 = 0x300000
OP = 0x400000
LAYER = 0x1000000

L_CKV = 65536
L_XN = 0
L_AC = 0
L_XL = 16384
L_SX = 20480
L_RQ = 53248
L_QS = 55296
L_CT = 57344
L_R6 = 57600
L_FR = 58112
L_R8 = 58624
LDS_BYTES = 131072

S_WG, S_R, S_W, S_LB, S_BUD, S_MODE = 's2', 's3', 's4', 's5', 's6', 's7'
SRD = dict(X=8, CKV=12, WQ=16, WUK=20, WUV=24, WO=28, W1=32, W3=36, W2=40, OUT=44, DBG=48, WS=52)
S_X, S_J = 's56', 's57'


def srd(n):
    b = SRD[n]
    return 's[%d:%d]' % (b, b + 3)


def vr(a, n=1):
    return 'v%d' % a if n == 1 else 'v[%d:%d]' % (a, a + n - 1)


def ar(a, n=1):
    return 'a%d' % a if n == 1 else 'a[%d:%d]' % (a, a + n - 1)


A_WQ, A_WUK, A_WUV, A_WO, A_W1, A_W3, A_W2 = 0, 16, 32, 48, 64, 72, 80
V_LANE, V_L4, V_L16 = 1, 2, 3
V_XO = 4

SCALE = 0.08838834764831845 * 1.4426950408889634
import struct


def f32hex(x):
    return '0x%08x' % struct.unpack('<I', struct.pack('<f', x))[0]


WNAME = {1: 'dword', 2: 'dwordx2', 4: 'dwordx4'}


class G(Asm):
    def __init__(self, stop=None):
        super().__init__()
        self.stop = stop
        self.phase_no = 0

    def ld(self, dst, n, vaddr, buf, soff='0', imm=0, sc1=False, acc=False):
        d = ar(dst, n) if acc else vr(dst, n)
        t = 'buffer_load_%s %s, %s, %s, %s offen' % (WNAME[n], d, vr(vaddr), srd(buf), soff)
        if imm:
            assert 0 <= imm < 4096
            t += ' offset:%d' % imm
        if sc1:
            t += ' sc1'
        self.emit(t)

    def st(self, src, n, vaddr, buf, soff='0', imm=0, sc1=False):
        t = 'buffer_store_%s %s, %s, %s, %s offen' % (WNAME[n], vr(src, n), vr(vaddr), srd(buf), soff)
        if imm:
            assert 0 <= imm < 4096
            t += ' offset:%d' % imm
        if sc1:
            t += ' sc1'
        self.emit(t)

    def clamp(self, regs):
        for r in regs:
            self.emit('v_min_u32 v%d, -2, v%d' % (r, r))

    def local_stores(self, fn, clear=False):
        if clear:
            fn(True)
            return
        lf, le = self.label('LF'), self.label('LE')
        self.emit('s_cmp_eq_u32 %s, 1' % S_MODE)
        self.emit('s_cbranch_scc1 %s' % lf)
        fn(True)
        self.emit('s_branch %s' % le)
        self.place(lf)
        fn(False)
        self.place(le)

    def poll(self, loads, regs, tmp):
        l0, l1 = self.label('LP'), self.label('LD')
        self.place(l0)
        loads()
        self.emit('s_waitcnt vmcnt(0)')
        regs = list(regs)
        if len(regs) == 1:
            self.emit('v_mov_b32 v%d, v%d' % (tmp, regs[0]))
        elif len(regs) == 2:
            self.emit('v_max_u32 v%d, v%d, v%d' % (tmp, regs[0], regs[1]))
        else:
            self.emit('v_max3_u32 v%d, v%d, v%d, v%d' % (tmp, regs[0], regs[1], regs[2]))
            i = 3
            while i < len(regs):
                if i + 1 < len(regs):
                    self.emit('v_max3_u32 v%d, v%d, v%d, v%d' % (tmp, tmp, regs[i], regs[i + 1]))
                    i += 2
                else:
                    self.emit('v_max_u32 v%d, v%d, v%d' % (tmp, tmp, regs[i]))
                    i += 1
        self.emit('v_cmp_eq_u32 vcc, -1, v%d' % tmp)
        self.emit('s_cbranch_vccz %s' % l1)
        self.emit('s_cmp_eq_u32 %s, 0' % S_BUD)
        self.emit('s_cbranch_scc1 %s' % l1)
        self.emit('s_sub_u32 %s, %s, 1' % (S_BUD, S_BUD))
        self.emit('s_branch %s' % l0)
        self.place(l1)

    def dpp_reduce(self, op, regs, full=True):
        steps = ['row_shr:1', 'row_shr:2', 'row_shr:4', 'row_shr:8']
        for s in steps:
            for r in regs:
                self.emit('%s_dpp v%d, v%d, v%d %s row_mask:0xf bank_mask:0xf' % (op, r, r, r, s))
        for r in regs:
            self.emit('%s_dpp v%d, v%d, v%d row_bcast:15 row_mask:0xa bank_mask:0xf' % (op, r, r, r))
        if full:
            for r in regs:
                self.emit('%s_dpp v%d, v%d, v%d row_bcast:31 row_mask:0xc bank_mask:0xf' % (op, r, r, r))

    def row_reduce(self, op, regs):
        for s in ['row_shr:1', 'row_shr:2', 'row_shr:4', 'row_shr:8']:
            for r in regs:
                self.emit('%s_dpp v%d, v%d, v%d %s row_mask:0xf bank_mask:0xf' % (op, r, r, r, s))

    def bf16r(self, dst, src, tmp=None):
        self.emit('v_cvt_pk_bf16_f32 v%d, v%d, v%d' % (dst, src, src))
        self.emit('v_lshlrev_b32 v%d, 16, v%d' % (dst, dst))

    def unpack(self, lo, hi, src):
        self.emit('v_lshlrev_b32 v%d, 16, v%d' % (lo, src))
        self.emit('v_and_b32 v%d, 0xffff0000, v%d' % (hi, src))

    def xswap(self, op, r, t, which):
        self.emit('v_mov_b32 v%d, v%d' % (t, r))
        self.emit('v_permlane%d_swap_b32 v%d, v%d' % (which, r, t))
        self.emit('%s v%d, v%d, v%d' % (op, r, r, t))

    def phase_end(self):
        self.phase_no += 1
        if self.stop is not None and self.phase_no == self.stop:
            self.emit('s_branch L_END')

    def pub_qp(self, data, clear, lb):
        skip = self.label('LS')
        self.emit('s_cmp_ge_u32 %s, 2' % S_W)
        self.emit('s_cbranch_scc1 %s' % skip)
        self.emit('s_and_b32 s58, %s, 3' % S_R)
        self.emit('s_lshl_b32 s58, s58, 1')
        self.emit('s_add_u32 s58, s58, %s' % S_W)
        self.emit('s_lshl_b32 s58, s58, 14')
        self.emit('s_lshr_b32 s59, %s, 2' % S_R)
        self.emit('s_lshl_b32 s59, s59, 8')
        self.emit('s_add_u32 s58, s58, s59')
        self.emit('s_add_u32 s58, s58, %s' % lb)
        self.local_stores(lambda sc: self.st(data, 1, V_L4, 'WS', 's58', QP, sc), clear)
        self.place(skip)

    def pub_qa(self, data, clear, lb):
        self.emit('s_and_b32 s58, %s, 7' % S_R)
        self.emit('s_lshr_b32 s59, s58, 1')
        self.emit('s_lshl_b32 s59, s59, 3')
        self.emit('s_and_b32 s58, s58, 1')
        self.emit('s_lshl_b32 s58, s58, 2')
        self.emit('s_add_u32 s58, s58, s59')
        self.emit('s_add_u32 s58, s58, %s' % S_W)
        self.emit('s_lshl_b32 s58, s58, 10')
        self.emit('s_lshr_b32 s59, %s, 3' % S_R)
        self.emit('s_lshl_b32 s59, s59, 4')
        self.emit('s_add_u32 s58, s58, s59')
        self.emit('s_add_u32 s58, s58, %s' % lb)
        self.emit('s_add_u32 s58, s58, %d' % QA)
        self.emit('v_and_b32 v8, 1, v%d' % V_LANE)
        self.emit('v_lshlrev_b32 v8, 15, v8')
        self.emit('v_lshrrev_b32 v9, 5, v%d' % V_LANE)
        self.emit('v_lshlrev_b32 v9, 9, v9')
        self.emit('v_add_u32 v8, v8, v9')
        self.emit('v_lshrrev_b32 v9, 4, v%d' % V_LANE)
        self.emit('v_and_b32 v9, 1, v9')
        self.emit('v_lshlrev_b32 v9, 3, v9')
        self.emit('v_add_u32 v8, v8, v9')
        self.emit('s_mov_b32 s60, 0x00030003')
        self.emit('s_mov_b32 s61, 0x00030003')
        self.emit('s_mov_b64 exec, s[60:61]')
        self.st(data, 2, 8, 'WS', 's58', 0, True)
        self.emit('s_mov_b64 exec, -1')

    def pub_op(self, datafn, clear, lb):
        self.emit('s_lshl_b32 s58, %s, 15' % S_R)
        self.emit('s_lshl_b32 s59, %s, 10' % S_W)
        self.emit('s_add_u32 s58, s58, s59')
        self.emit('s_add_u32 s58, s58, %s' % lb)
        self.emit('s_add_u32 s58, s58, %d' % OP)
        self.emit('s_add_u32 s59, s58, 8192')
        self.emit('s_add_u32 s62, s58, 16384')
        self.emit('s_add_u32 s63, s58, 24576')
        self.emit('v_lshrrev_b32 v8, 5, v%d' % V_LANE)
        self.emit('v_lshlrev_b32 v8, 12, v8')
        self.emit('v_and_b32 v9, 31, v%d' % V_LANE)
        self.emit('v_lshlrev_b32 v9, 3, v9')
        self.emit('v_add_u32 v8, v8, v9')
        so = ['s58', 's59', 's62', 's63']

        def f(sc):
            for nt in range(4):
                for g in range(4):
                    self.st(datafn(nt, g), 2, 8, 'WS', so[g], nt * 256, sc)
        self.local_stores(f, clear)

    def pub_st(self, data, clear, lb):
        skip = self.label('LS')
        self.emit('s_cmp_lg_u32 %s, 0' % S_W)
        self.emit('s_cbranch_scc1 %s' % skip)
        self.emit('s_lshr_b32 s58, %s, 7' % S_R)
        self.emit('s_lshl_b32 s58, s58, 15')
        self.emit('s_and_b32 s59, %s, 127' % S_R)
        self.emit('s_lshl_b32 s59, s59, 5')
        self.emit('s_add_u32 s58, s58, s59')
        self.emit('s_add_u32 s58, s58, %s' % lb)
        self.emit('s_add_u32 s58, s58, %d' % ST)
        self.emit('v_and_b32 v8, 31, v%d' % V_LANE)
        self.emit('v_lshrrev_b32 v9, 2, v8')
        self.emit('v_lshlrev_b32 v9, 12, v9')
        self.emit('v_and_b32 v8, 3, v8')
        self.emit('v_lshlrev_b32 v8, 2, v8')
        self.emit('v_add_u32 v8, v8, v9')
        self.emit('v_lshrrev_b32 v9, 5, v%d' % V_LANE)
        self.emit('v_lshlrev_b32 v9, 4, v9')
        self.emit('v_add_u32 v8, v8, v9')
        self.local_stores(lambda sc: self.st(data, 1, 8, 'WS', 's58', 0, sc), clear)
        self.place(skip)

    def pub_xo(self, data, lb):
        self.emit('s_lshl_b32 s58, %s, 11' % S_R)
        self.emit('s_add_u32 s58, s58, %s' % lb)
        self.emit('s_add_u32 s58, s58, %d' % XO)
        self.emit('v_lshlrev_b32 v8, 3, v0')
        self.st(data, 2, 8, 'WS', 's58', 0, True)

    def pub_xs(self, data, lb):
        skip = self.label('LS')
        self.emit('s_and_b32 s58, %s, 3' % S_J)
        self.emit('s_or_b32 s58, s58, %s' % S_W)
        self.emit('s_cmp_lg_u32 s58, 0')
        self.emit('s_cbranch_scc1 %s' % skip)
        self.emit('s_lshr_b32 s58, %s, 2' % S_R)
        self.emit('s_lshl_b32 s58, s58, 5')
        self.emit('s_add_u32 s58, s58, %s' % lb)
        self.emit('s_add_u32 s58, s58, %d' % XS)
        self.emit('v_mov_b32 v8, 0')
        self.emit('s_mov_b64 exec, 1')
        self.st(data, 4, 8, 'WS', 's58', 0, True)
        self.st(data + 4, 4, 8, 'WS', 's58', 16, True)
        self.emit('s_mov_b64 exec, -1')
        self.place(skip)

    def pub_cp(self, d0, d1, clear, lb):
        self.emit('s_lshl_b32 s58, %s, 15' % S_J)
        self.emit('s_lshl_b32 s59, %s, 2' % S_X)
        self.emit('s_add_u32 s59, s59, %s' % S_W)
        self.emit('s_lshl_b32 s59, s59, 9')
        self.emit('s_add_u32 s58, s58, s59')
        self.emit('s_add_u32 s58, s58, %s' % lb)
        self.emit('s_add_u32 s58, s58, %d' % CP)
        self.emit('s_add_u32 s59, s58, 16384')
        self.emit('v_lshlrev_b32 v8, 3, v%d' % V_LANE)

        def f(sc):
            self.st(d0, 2, 8, 'WS', 's58', 0, sc)
            self.st(d1, 2, 8, 'WS', 's59', 0, sc)
        self.local_stores(f, clear)

    def pub_po(self, base, d0, d1, clear, lb):
        self.emit('s_lshl_b32 s58, %s, 12' % S_R)
        self.emit('s_lshl_b32 s59, %s, 9' % S_W)
        self.emit('s_add_u32 s58, s58, s59')
        self.emit('s_add_u32 s58, s58, %s' % lb)
        self.emit('s_add_u32 s58, s58, %d' % base)
        self.emit('v_lshlrev_b32 v8, 3, v%d' % V_LANE)

        def f(sc):
            self.st(d0, 2, 8, 'WS', 's58', 0, sc)
            self.st(d1, 2, 8, 'WS', 's58', 2048, sc)
        self.local_stores(f, clear)

    def pub_xp(self, base, data, lb):
        skip = self.label('LS')
        self.emit('s_cmp_lg_u32 %s, 0' % S_W)
        self.emit('s_cbranch_scc1 %s' % skip)
        self.emit('s_lshl_b32 s58, %s, 7' % S_R)
        self.emit('s_add_u32 s58, s58, %s' % lb)
        self.emit('s_add_u32 s58, s58, %d' % base)
        self.emit('s_mov_b64 exec, 0xff')
        self.st(data, 4, V_L16, 'WS', 's58', 0, True)
        self.emit('s_mov_b64 exec, -1')
        self.place(skip)

    def clears(self, lb, early, late):
        if early:
            self.pub_qp(16, True, lb)
            self.pub_qa(16, True, lb)
        if late:
            self.pub_op(lambda nt, g: 16, True, lb)
            self.pub_st(16, True, lb)
            self.pub_xo(16, lb)
            for i in range(20, 24):
                self.emit('v_mov_b32 v%d, -1' % i)
            self.pub_xs(16, lb)
            self.pub_cp(16, 16, True, lb)
            self.pub_po(PO, 16, 16, True, lb)
            self.pub_xp(XP, 16, lb)
            self.pub_po(PO2, 16, 16, True, lb)
            self.pub_xp(XP2, 16, lb)

    def prologue(self):
        e = self.emit
        e('s_cmp_ge_u32 s2, 256')
        e('s_cbranch_scc1 L_END')
        e('s_load_dwordx16 s[64:79], s[0:1], 0')
        e('s_load_dwordx8 s[80:87], s[0:1], 64')
        e('s_load_dwordx2 s[88:89], s[0:1], 96')
        e('v_lshrrev_b32 v1, 6, v0')
        e('v_readfirstlane_b32 %s, v1' % S_W)
        e('v_and_b32 v1, 63, v0')
        e('v_lshlrev_b32 v2, 2, v1')
        e('v_lshlrev_b32 v3, 4, v1')
        e('s_and_b32 s58, s2, 7')
        e('s_lshl_b32 s58, s58, 5')
        e('s_lshr_b32 s59, s2, 3')
        e('s_or_b32 %s, s58, s59' % S_R)
        e('s_lshr_b32 %s, %s, 5' % (S_X, S_R))
        e('s_and_b32 %s, %s, 31' % (S_J, S_R))
        e('s_mov_b32 %s, 0' % S_LB)
        e('s_mov_b32 %s, 60000' % S_BUD)
        e('s_mov_b32 %s, 0' % S_MODE)
        e('s_waitcnt lgkmcnt(0)')
        ptrs = dict(X=(64, 2048), CKV=(66, 16777216), WQ=(68, 4194304), WUK=(70, 4194304), WUV=(72, 4194304),
                    WO=(74, 4194304), W1=(78, 1835008), W3=(80, 1835008), W2=(82, 1835008), OUT=(84, 2048),
                    DBG=(86, 256), WS=(88, 268435456))
        for n, (p, sz) in ptrs.items():
            b = SRD[n]
            e('s_mov_b32 s%d, s%d' % (b, p))
            e('s_and_b32 s%d, s%d, 0xffff' % (b + 1, p + 1))
            e('s_mov_b32 s%d, %d' % (b + 2, sz))
            e('s_mov_b32 s%d, 0x20000' % (b + 3))
        for i in range(16, 20):
            e('v_mov_b32 v%d, -1' % i)
        self.clears(S_LB, True, False)
        nb = 0
        e('s_lshl_b32 s58, %s, 9' % S_W)
        e('v_lshlrev_b32 v8, 3, v1')
        self.ld(6, 2, 8, 'X', 's58'); nb += 1
        e('s_and_b32 s58, %s, 3' % S_R)
        e('s_lshl_b32 s58, s58, 2')
        e('s_add_u32 s58, s58, %s' % S_W)
        e('s_lshl_b32 s58, s58, 18')
        e('s_lshr_b32 s59, %s, 2' % S_R)
        e('s_lshl_b32 s59, s59, 7')
        e('s_add_u32 s58, s58, s59')
        e('v_lshrrev_b32 v8, 3, v1')
        e('v_lshlrev_b32 v8, 13, v8')
        e('v_and_b32 v9, 7, v1')
        e('v_lshlrev_b32 v9, 4, v9')
        e('v_add_u32 v8, v8, v9')
        for i in range(4):
            self.ld(A_WQ + 4 * i, 4, 8, 'WQ', 's58', acc=True); nb += 1
            if i < 3:
                e('s_add_u32 s58, s58, 65536')
        e('s_and_b32 s58, %s, 7' % S_R)
        e('s_lshl_b32 s58, s58, 2')
        e('s_add_u32 s58, s58, %s' % S_W)
        e('s_lshl_b32 s58, s58, 17')
        e('s_lshr_b32 s59, %s, 3' % S_R)
        e('s_lshl_b32 s59, s59, 8')
        e('s_add_u32 s58, s58, s59')
        e('v_and_b32 v8, 15, v1')
        e('v_lshlrev_b32 v8, 13, v8')
        e('v_lshrrev_b32 v9, 4, v1')
        e('v_lshlrev_b32 v9, 4, v9')
        e('v_add_u32 v8, v8, v9')
        for k in range(4):
            self.ld(A_WUK + 4 * k, 4, 8, 'WUK', 's58', 64 * k, acc=True); nb += 1
        e('s_lshl_b32 s58, %s, 16' % S_R)
        e('s_lshl_b32 s59, %s, 14' % S_W)
        e('s_add_u32 s58, s58, s59')
        e('s_add_u32 s59, s59, %d' % L_CKV)
        for i in range(16):
            f = ((i & 3) << 2) | (i >> 2)
            e('v_xor_b32 v8, %d, v1' % f)
            e('v_lshlrev_b32 v8, 4, v8')
            e('s_mov_b32 m0, s59')
            e('buffer_load_dwordx4 v8, %s, s58 offen lds' % srd('CKV')); nb += 1
            if i < 15:
                e('s_add_u32 s58, s58, 1024')
                e('s_add_u32 s59, s59, 1024')
        e('s_waitcnt vmcnt(%d)' % nb)
        e('s_barrier')
        skip = self.label('LS')
        e('s_cmp_lg_u32 %s, 0' % S_W)
        e('s_cbranch_scc1 %s' % skip)
        e('s_getreg_b32 s58, hwreg(HW_REG_XCC_ID)')
        e('s_and_b32 s58, s58, 15')
        e('s_add_u32 s58, s58, 1')
        e('v_mov_b32 v8, s58')
        e('v_mov_b32 v9, %s' % S_R)
        e('s_mov_b64 exec, 1')
        e('buffer_store_byte v8, v9, %s, 0 offen sc1' % srd('DBG'))
        e('s_mov_b64 exec, -1')
        self.place(skip)
        self.clears(S_LB, False, True)
        self.n_after_x = None

    def bulk2(self):
        e = self.emit
        e('s_lshl_b32 s58, %s, 17' % S_J)
        e('s_lshl_b32 s59, %s, 2' % S_X)
        e('s_add_u32 s59, s59, %s' % S_W)
        e('s_lshl_b32 s59, s59, 8')
        e('s_add_u32 s58, s58, s59')
        for i in range(16):
            self.ld(A_WUV + i, 1, V_L4, 'WUV', 's58', acc=True)
            if i < 15:
                e('s_add_u32 s58, s58, 8192')
        e('s_lshl_b32 s58, %s, 14' % S_R)
        e('s_lshl_b32 s59, %s, 8' % S_W)
        e('s_add_u32 s58, s58, s59')
        for i in range(16):
            self.ld(A_WO + i, 1, V_L4, 'WO', 's58', (i & 3) * 1024, acc=True)
            if (i & 3) == 3 and i < 15:
                e('s_add_u32 s58, s58, 4096')
        skip = self.label('LS')
        e('s_cmp_ge_u32 %s, 28' % S_J)
        e('s_cbranch_scc1 %s' % skip)
        e('s_mul_i32 s62, %s, 28' % S_X)
        e('s_add_u32 s62, s62, %s' % S_J)
        e('s_lshl_b32 s58, s62, 4')
        e('s_mul_i32 s59, %s, %d' % (S_W, 64 * 3584))
        e('s_add_u32 s58, s58, s59')
        e('s_add_u32 s59, s58, %d' % (256 * 3584))
        e('s_movk_i32 s63, 3584')
        e('v_mul_lo_u32 v8, v1, s63')
        self.ld(A_W1, 4, 8, 'W1', 's58', acc=True)
        self.ld(A_W1 + 4, 4, 8, 'W1', 's59', acc=True)
        self.ld(A_W3, 4, 8, 'W3', 's58', acc=True)
        self.ld(A_W3 + 4, 4, 8, 'W3', 's59', acc=True)
        e('s_lshl_b32 s58, s62, 13')
        e('s_lshl_b32 s59, %s, 8' % S_W)
        e('s_add_u32 s58, s58, s59')
        for i in range(8):
            self.ld(A_W2 + i, 1, V_L4, 'W2', 's58', (i & 3) * 1024, acc=True)
            if i == 3:
                e('s_add_u32 s58, s58, 4096')
        self.place(skip)

    def flagwait(self):
        e = self.emit
        l0, l1 = self.label('LP'), self.label('LD')
        self.place(l0)
        self.ld(8, 1, V_L4, 'DBG', '0', 0, True)
        e('s_waitcnt vmcnt(0)')
        e('v_subrev_u32 v9, 0x01010101, v8')
        e('v_not_b32 v10, v8')
        e('v_and_b32 v9, v9, v10')
        e('v_and_b32 v9, 0x80808080, v9')
        e('v_cmp_ne_u32 vcc, 0, v9')
        e('s_cbranch_vccz %s' % l1)
        e('s_cmp_eq_u32 %s, 0' % S_BUD)
        e('s_cbranch_scc1 %s' % l1)
        e('s_sub_u32 %s, %s, 1' % (S_BUD, S_BUD))
        e('s_branch %s' % l0)
        self.place(l1)
        e('v_and_b32 v9, 0xff, v8')
        e('s_mov_b32 s58, 0x01010101')
        e('v_mul_lo_u32 v9, v9, s58')
        e('v_cmp_ne_u32 s[60:61], v9, v8')
        e('v_mov_b32 v10, v8')
        e('v_mov_b32_dpp v10, v8 row_shr:1 row_mask:0xf bank_mask:0xf')
        e('v_cmp_ne_u32 vcc, v10, v8')
        e('s_mov_b32 s58, 0xfefefefe')
        e('s_mov_b32 s59, 0xfefefefe')
        e('s_and_b64 vcc, vcc, s[58:59]')
        e('s_or_b64 vcc, vcc, s[60:61]')
        e('s_cmp_eq_u64 vcc, 0')
        e('s_cselect_b32 %s, 1, 0' % S_MODE)

    def gather_x(self, base, lb):
        e = self.emit
        e('s_lshl_b32 s58, %s, 10' % S_W)
        e('s_add_u32 s58, s58, %s' % lb)
        e('s_add_u32 s58, s58, %d' % base)
        for x in range(1, 8):
            e('s_add_u32 s%d, s58, %d' % (63 + x, 4096 * x))
        so = ['s58'] + ['s%d' % (63 + x) for x in range(1, 8)]

        def loads():
            for x in range(8):
                self.ld(16 + 4 * x, 4, V_L16, 'WS', so[x], 0, True)
        self.poll(loads, range(16, 48), 8)
        for k in range(4):
            e('v_add_f32 v%d, v%d, v%d' % (16 + k, 16 + k, 20 + k))
            e('v_add_f32 v%d, v%d, v%d' % (24 + k, 24 + k, 28 + k))
            e('v_add_f32 v%d, v%d, v%d' % (32 + k, 32 + k, 36 + k))
            e('v_add_f32 v%d, v%d, v%d' % (40 + k, 40 + k, 44 + k))
        for k in range(4):
            e('v_add_f32 v%d, v%d, v%d' % (16 + k, 16 + k, 24 + k))
            e('v_add_f32 v%d, v%d, v%d' % (32 + k, 32 + k, 40 + k))
        for k in range(4):
            e('v_add_f32 v%d, v%d, v%d' % (16 + k, 16 + k, 32 + k))
        for k in range(4):
            self.bf16r(16 + k, 16 + k)
        for k in range(4):
            e('v_add_f32 v%d, v%d, v%d' % (V_XO + k, V_XO + k, 16 + k))
        for k in range(4):
            self.bf16r(V_XO + k, V_XO + k)

    def layernorm(self):
        e = self.emit
        e('v_lshlrev_b32 v8, 4, v0')
        e('ds_write_b128 v8, v[4:7] offset:%d' % L_XL)
        e('s_waitcnt lgkmcnt(0)')
        e('s_barrier')
        e('v_lshlrev_b32 v8, 5, v1')
        e('ds_read_b128 v[16:19], v8 offset:%d' % L_XL)
        e('ds_read_b128 v[20:23], v8 offset:%d' % (L_XL + 16))
        e('ds_read_b128 v[24:27], v8 offset:%d' % (L_XL + 2048))
        e('ds_read_b128 v[28:31], v8 offset:%d' % (L_XL + 2064))
        e('s_waitcnt lgkmcnt(0)')
        for b in range(2):
            x0 = 16 + 8 * b
            s = 32 + b
            e('v_add_f32 v%d, v%d, v%d' % (s, x0, x0 + 1))
            for k in range(2, 8):
                e('v_add_f32 v%d, v%d, v%d' % (s, s, x0 + k))
        self.dpp_reduce('v_add_f32', [32, 33])
        e('v_readlane_b32 s58, v32, 63')
        e('v_readlane_b32 s59, v33, 63')
        e('v_mov_b32 v34, %s' % f32hex(1.0 / 512))
        e('v_mul_f32 v36, s58, v34')
        e('v_mul_f32 v37, s59, v34')
        for b in range(2):
            x0 = 16 + 8 * b
            s = 32 + b
            for k in range(8):
                e('v_sub_f32 v38, v%d, v%d' % (x0 + k, 36 + b))
                if k == 0:
                    e('v_mul_f32 v%d, v38, v38' % s)
                else:
                    e('v_fmac_f32 v%d, v38, v38' % s)
        self.dpp_reduce('v_add_f32', [32, 33])
        e('v_readlane_b32 s58, v32, 63')
        e('v_readlane_b32 s59, v33, 63')
        e('v_mul_f32 v32, s58, v34')
        e('v_mul_f32 v33, s59, v34')
        for b in range(2):
            self.bf16r(32 + b, 32 + b)
            e('v_add_f32 v%d, %s, v%d' % (32 + b, f32hex(1e-5), 32 + b))
            self.bf16r(32 + b, 32 + b)
            e('v_sqrt_f32 v%d, v%d' % (32 + b, 32 + b))
            self.bf16r(32 + b, 32 + b)
            e('v_rcp_f32 v%d, v%d' % (34 + b, 32 + b))
            self.bf16r(36 + b, 36 + b)
        for b in range(2):
            e('v_fma_f32 v38, -v%d, v%d, 2.0' % (32 + b, 34 + b))
            e('v_mul_f32 v%d, v%d, v38' % (34 + b, 34 + b))
        for b in range(2):
            x0 = 16 + 8 * b
            for k in range(8):
                e('v_sub_f32 v%d, v%d, v%d' % (x0 + k, x0 + k, 36 + b))
            for k in range(8):
                self.bf16r(x0 + k, x0 + k)
            for k in range(8):
                e('v_mul_f32 v%d, v%d, v%d' % (x0 + k, x0 + k, 34 + b))
            for k in range(8):
                self.bf16r(x0 + k, x0 + k)
        e('s_lshl_b32 s58, %s, 12' % S_W)
        e('v_add_u32 v8, s58, v8')
        e('ds_write_b128 v8, v[16:19] offset:%d' % L_XN)
        e('ds_write_b128 v8, v[20:23] offset:%d' % (L_XN + 16))
        e('ds_write_b128 v8, v[24:27] offset:%d' % (L_XN + 2048))
        e('ds_write_b128 v8, v[28:31] offset:%d' % (L_XN + 2064))
        e('s_waitcnt lgkmcnt(0)')

    def p1(self):
        e = self.emit
        e('s_and_b32 s58, %s, 3' % S_R)
        e('s_lshl_b32 s58, s58, 2')
        e('s_add_u32 s58, s58, %s' % S_W)
        e('s_lshl_b32 s58, s58, 7')
        e('s_lshl_b32 s59, %s, 12' % S_W)
        e('s_add_u32 s58, s58, s59')
        e('v_lshrrev_b32 v8, 3, v1')
        e('v_lshlrev_b32 v8, 2, v8')
        e('v_add_u32 v8, s58, v8')
        for i in range(4):
            for b in range(2):
                e('ds_read_b32 v%d, v8 offset:%d' % (16 + 2 * i + b, L_XN + b * 2048 + i * 32))
        for k in range(16):
            e('v_mov_b32 v%d, 0' % (32 + k))
        e('s_waitcnt lgkmcnt(0)')
        for i in range(4):
            for d in range(4):
                e('v_accvgpr_read_b32 v24, a%d' % (A_WQ + 4 * i + d))
                self.unpack(25, 26, 24)
                for b in range(2):
                    e('v_fmac_f32 v%d, v%d, v25' % (32 + 8 * b + 2 * d, 16 + 2 * i + b))
                    e('v_fmac_f32 v%d, v%d, v26' % (32 + 8 * b + 2 * d + 1, 16 + 2 * i + b))
        for k in range(8):
            e('v_permlane32_swap_b32 v%d, v%d' % (32 + k, 40 + k))
            e('v_add_f32 v%d, v%d, v%d' % (32 + k, 32 + k, 40 + k))
        for k in range(4):
            e('v_permlane16_swap_b32 v%d, v%d' % (32 + k, 36 + k))
            e('v_add_f32 v%d, v%d, v%d' % (32 + k, 32 + k, 36 + k))
        for k in range(4):
            e('v_add_f32_dpp v%d, v%d, v%d row_ror:8 row_mask:0xf bank_mask:0xf' % (32 + k, 32 + k, 32 + k))
        e('v_and_b32 v8, 7, v1')
        e('v_lshlrev_b32 v8, 5, v8')
        e('v_lshrrev_b32 v9, 4, v1')
        e('v_and_b32 v9, 1, v9')
        e('v_lshlrev_b32 v9, 4, v9')
        e('v_add_u32 v8, v8, v9')
        e('v_lshrrev_b32 v9, 5, v1')
        e('v_lshlrev_b32 v9, 8, v9')
        e('v_add_u32 v8, v8, v9')
        e('s_lshl_b32 s58, %s, 9' % S_W)
        e('v_add_u32 v8, s58, v8')
        e('ds_write_b128 v8, v[32:35] offset:%d' % L_RQ)
        e('s_waitcnt lgkmcnt(0)')
        e('s_barrier')
        e('s_and_b32 s58, %s, 1' % S_W)
        e('s_lshl_b32 s58, s58, 8')
        e('v_add_u32 v8, s58, v2')
        for w in range(4):
            e('ds_read_b32 v%d, v8 offset:%d' % (16 + w, L_RQ + 512 * w))
        e('s_waitcnt lgkmcnt(0)')
        e('v_add_f32 v16, v16, v17')
        e('v_add_f32 v18, v18, v19')
        e('v_add_f32 v16, v16, v18')
        self.clamp([16])

    def p2(self):
        e = self.emit
        e('s_lshr_b32 s58, %s, 3' % S_R)
        e('s_lshl_b32 s58, s58, 9')
        e('s_add_u32 s58, s58, %s' % S_LB)
        e('s_add_u32 s58, s58, %d' % QP)
        e('s_add_u32 s59, s58, 32768')
        e('s_add_u32 s62, s58, 65536')
        e('s_add_u32 s63, s58, 98304')
        e('v_lshrrev_b32 v9, 5, v1')
        e('v_lshlrev_b32 v9, 14, v9')
        e('v_and_b32 v10, 31, v1')
        e('v_lshlrev_b32 v10, 4, v10')
        e('v_add_u32 v9, v9, v10')
        so = ['s58', 's59', 's62', 's63']

        def loads():
            for ks in range(4):
                self.ld(16 + 4 * ks, 4, 9, 'WS', so[ks], 0, True)
        self.poll(loads, range(16, 32), 8)
        for k in range(4):
            e('v_add_f32 v%d, v%d, v%d' % (16 + k, 16 + k, 20 + k))
            e('v_add_f32 v%d, v%d, v%d' % (24 + k, 24 + k, 28 + k))
        for k in range(4):
            e('v_add_f32 v%d, v%d, v%d' % (16 + k, 16 + k, 24 + k))
        e('v_cvt_pk_bf16_f32 v20, v16, v17')
        e('v_cvt_pk_bf16_f32 v21, v18, v19')
        e('s_lshl_b32 s58, %s, 9' % S_W)
        e('v_lshlrev_b32 v8, 3, v1')
        e('v_add_u32 v8, s58, v8')
        e('ds_write_b64 v8, v[20:21] offset:%d' % L_QS)
        e('v_and_b32 v8, 1, v1')
        e('v_lshlrev_b32 v8, 8, v8')
        e('v_lshrrev_b32 v9, 4, v1')
        e('v_lshlrev_b32 v9, 4, v9')
        e('v_add_u32 v8, v8, v9')
        e('v_add_u32 v8, s58, v8')
        e('s_waitcnt lgkmcnt(0)')
        for k in range(4):
            e('ds_read_b128 v[%d:%d], v8 offset:%d' % (24 + 4 * k, 27 + 4 * k, L_QS + 64 * k))
        for k in range(4):
            e('v_mov_b32 v%d, 0' % (16 + k))
        e('s_waitcnt lgkmcnt(0)')
        for k in range(4):
            e('v_mfma_f32_16x16x32_bf16 v[16:19], a[%d:%d], v[%d:%d], v[16:19]' % (A_WUK + 4 * k, A_WUK + 4 * k + 3, 24 + 4 * k, 27 + 4 * k))
        e('s_mov_b32 s58, %s' % f32hex(SCALE))
        for k in range(4):
            e('v_mul_f32 v%d, s58, v%d' % (16 + k, 16 + k))
        e('v_cvt_pk_bf16_f32 v20, v16, v17')
        e('v_cvt_pk_bf16_f32 v21, v18, v19')
        self.clamp([20, 21])
        self.pub_qa(20, False, S_LB)

    def p3(self, first):
        e = self.emit
        BQ = 16
        AS = 48
        TMP = 80
        PF = 112
        AO = 128
        CF = 192
        ADR = 224
        e('s_lshr_b32 s58, %s, 7' % S_R)
        e('s_lshl_b32 s58, s58, 2')
        e('s_add_u32 s58, s58, %s' % S_W)
        e('s_lshl_b32 s58, s58, 13')
        e('s_add_u32 s58, s58, %s' % S_LB)
        e('s_add_u32 s58, s58, %d' % QA)
        e('s_add_u32 s59, s58, 4096')

        def loads():
            for ks in range(8):
                self.ld(BQ + 4 * ks, 4, V_L16, 'WS', 's58' if ks < 4 else 's59', (ks & 3) * 1024, True)
        self.poll(loads, range(BQ, BQ + 32), 8)
        if first:
            e('s_barrier')
            self.bulk2()
        e('v_and_b32 v8, 3, v1')
        e('v_lshlrev_b32 v8, 2, v8')
        e('v_lshrrev_b32 v9, 2, v1')
        e('v_and_b32 v9, 3, v9')
        e('v_or_b32 v8, v8, v9')
        e('v_lshrrev_b32 v9, 5, v1')
        e('v_xor_b32 v8, v8, v9')
        e('v_lshlrev_b32 v8, 4, v8')
        e('v_and_b32 v9, 31, v1')
        e('v_lshlrev_b32 v9, 10, v9')
        e('v_or_b32 v8, v8, v9')
        e('s_lshl_b32 s58, %s, 8' % S_W)
        e('s_or_b32 s58, s58, %d' % L_CKV)
        e('v_or_b32 v8, s58, v8')
        for k in range(32):
            e('v_mov_b32 v%d, 0' % (AS + k))
        for ks in range(8):
            e('v_xor_b32 v%d, %d, v8' % (ADR + ks, ks << 5))
        for half in range(2):
            for kk in range(4):
                ks = half * 4 + kk
                for mt in range(2):
                    e('ds_read_b128 v[%d:%d], v%d offset:%d' % (CF + 8 * kk + 4 * mt, CF + 8 * kk + 4 * mt + 3, ADR + ks, mt * 32768))
            for kk in range(4):
                ks = half * 4 + kk
                e('s_waitcnt lgkmcnt(%d)' % (6 - 2 * kk))
                for mt in range(2):
                    e('v_mfma_f32_32x32x16_bf16 v[%d:%d], v[%d:%d], v[%d:%d], v[%d:%d]' % (
                        AS + 16 * mt, AS + 16 * mt + 15, CF + 8 * kk + 4 * mt, CF + 8 * kk + 4 * mt + 3,
                        BQ + 4 * ks, BQ + 4 * ks + 3, AS + 16 * mt, AS + 16 * mt + 15))
        e('s_lshl_b32 s58, %s, 13' % S_W)
        e('v_add_u32 v8, s58, v3')
        for q in range(8):
            e('ds_write_b128 v8, v[%d:%d] offset:%d' % (AS + 4 * q, AS + 4 * q + 3, L_SX + 1024 * q))
        e('s_waitcnt lgkmcnt(0)')
        e('s_barrier')
        for dw in range(1, 4):
            e('s_xor_b32 s58, %s, %d' % (S_W, dw))
            e('s_lshl_b32 s58, s58, 13')
            e('v_add_u32 v8, s58, v3')
            for q in range(8):
                e('ds_read_b128 v[%d:%d], v8 offset:%d' % (TMP + 4 * q, TMP + 4 * q + 3, L_SX + 1024 * q))
            e('s_waitcnt lgkmcnt(0)')
            for k in range(32):
                e('v_add_f32 v%d, v%d, v%d' % (AS + k, AS + k, TMP + k))
        e('v_max3_f32 v10, v%d, v%d, v%d' % (AS, AS + 1, AS + 2))
        for k in range(3, 31, 2):
            e('v_max3_f32 v10, v10, v%d, v%d' % (AS + k, AS + k + 1))
        e('v_max_f32 v10, v10, v%d' % (AS + 31))
        self.xswap('v_max_f32', 10, 11, 32)
        for k in range(32):
            e('v_sub_f32 v%d, v%d, v10' % (AS + k, AS + k))
        for k in range(32):
            e('v_exp_f32 v%d, v%d' % (AS + k, AS + k))
        e('v_add_f32 v12, v%d, v%d' % (AS, AS + 1))
        for k in range(2, 32):
            e('v_add_f32 v12, v12, v%d' % (AS + k))
        self.xswap('v_add_f32', 12, 11, 32)
        for k in range(16):
            e('v_cvt_pk_bf16_f32 v%d, v%d, v%d' % (PF + k, AS + 2 * k, AS + 2 * k + 1))
        e('v_cmp_gt_u32 vcc, 32, v1')
        e('v_cndmask_b32 v13, v12, v10, vcc')
        self.clamp([13])
        e('v_and_b32 v9, 15, v1')
        e('v_lshrrev_b32 v9, 2, v9')
        e('v_lshrrev_b32 v11, 5, v1')
        e('v_lshlrev_b32 v8, 2, v11')
        e('v_add_u32 v8, v8, v9')
        e('v_lshlrev_b32 v8, 10, v8')
        e('v_lshlrev_b32 v9, 6, v9')
        e('v_or_b32 v8, v8, v9')
        e('v_lshrrev_b32 v9, 4, v1')
        e('v_and_b32 v9, 1, v9')
        e('v_lshlrev_b32 v9, 5, v9')
        e('v_or_b32 v8, v8, v9')
        e('v_lshrrev_b32 v9, 1, v1')
        e('v_and_b32 v9, 1, v9')
        e('v_xor_b32 v9, v9, v11')
        e('v_lshlrev_b32 v9, 4, v9')
        e('v_or_b32 v8, v8, v9')
        e('v_and_b32 v9, 1, v1')
        e('v_lshlrev_b32 v9, 3, v9')
        e('v_or_b32 v8, v8, v9')
        e('s_lshl_b32 s58, %s, 8' % S_W)
        e('s_or_b32 s58, s58, %d' % L_CKV)
        e('v_or_b32 v8, s58, v8')
        for nt in range(4):
            for j in range(2):
                e('v_xor_b32 v%d, 0x%x, v8' % (ADR + 2 * nt + j, (nt << 6) | (j * 0x2020)))
        for k in range(64):
            e('v_mov_b32 v%d, 0' % (AO + k))
        for kstep in range(4):
            for nt in range(4):
                for j in range(2):
                    e('ds_read_b64_tr_b16 v[%d:%d], v%d offset:%d' % (CF + 4 * nt + 2 * j + 16 * (kstep & 1), CF + 4 * nt + 2 * j + 1 + 16 * (kstep & 1), ADR + 2 * nt + j, kstep * 16384))
            for nt in range(4):
                e('s_waitcnt lgkmcnt(%d)' % (6 - 2 * nt))
                e('v_mfma_f32_32x32x16_bf16 v[%d:%d], v[%d:%d], v[%d:%d], v[%d:%d]' % (
                    AO + 16 * nt, AO + 16 * nt + 15, PF + 4 * kstep, PF + 4 * kstep + 3,
                    CF + 4 * nt + 16 * (kstep & 1), CF + 4 * nt + 3 + 16 * (kstep & 1), AO + 16 * nt, AO + 16 * nt + 15))
        for nt in range(4):
            for g in range(4):
                a = AO + 16 * nt + 4 * g
                d = TMP + 8 * nt + 2 * g
                e('v_cvt_pk_bf16_f32 v%d, v%d, v%d' % (d, a, a + 1))
                e('v_cvt_pk_bf16_f32 v%d, v%d, v%d' % (d + 1, a + 2, a + 3))
        self.clamp(range(TMP, TMP + 32))
        self.pub_op(lambda nt, g: TMP + 8 * nt + 2 * g, False, S_LB)
        self.pub_st(13, False, S_LB)

    def p3b(self):
        e = self.emit
        e('s_lshr_b32 s58, %s, 2' % S_X)
        e('s_lshl_b32 s58, s58, 3')
        e('s_lshr_b32 s59, %s, 2' % S_J)
        e('s_add_u32 s58, s58, s59')
        e('s_lshl_b32 s58, s58, 12')
        e('s_and_b32 s62, %s, 3' % S_X)
        e('s_lshl_b32 s62, s62, 10')
        e('s_add_u32 s58, s58, s62')
        e('s_add_u32 s58, s58, %s' % S_LB)
        e('s_add_u32 s58, s58, %d' % ST)
        e('v_and_b32 v9, 31, v1')
        e('v_lshlrev_b32 v9, 5, v9')
        e('s_lshl_b32 s62, %s, 5' % S_X)
        e('s_lshl_b32 s63, %s, 3' % S_W)
        e('s_add_u32 s62, s62, s63')
        e('s_lshl_b32 s62, s62, 15')
        e('s_lshl_b32 s59, s59, 12')
        e('s_add_u32 s62, s62, s59')
        e('s_and_b32 s59, %s, 3' % S_J)
        e('s_lshl_b32 s59, s59, 10')
        e('s_add_u32 s62, s62, s59')
        e('s_add_u32 s62, s62, %s' % S_LB)
        e('s_add_u32 s64, s62, %d' % OP)
        for q in range(1, 8):
            e('s_add_u32 s%d, s64, %d' % (64 + q, 32768 * q))

        def loads():
            self.ld(16, 4, 9, 'WS', 's58', 0, True)
            self.ld(20, 4, 9, 'WS', 's58', 16, True)
            for q in range(8):
                self.ld(24 + 4 * q, 4, V_L16, 'WS', 's%d' % (64 + q), 0, True)
        self.poll(loads, range(16, 56), 8)
        for h in range(4):
            e('v_mov_b32 v%d, v%d' % (56 + h, 16 + h))
        self.dpp_reduce('v_max_f32', [56, 57, 58, 59])
        for h in range(4):
            e('v_readlane_b32 s%d, v%d, 63' % (72 + h, 56 + h))
        for h in range(4):
            e('v_subrev_f32 v%d, s%d, v%d' % (56 + h, 72 + h, 16 + h))
        for h in range(4):
            e('v_exp_f32 v%d, v%d' % (56 + h, 56 + h))
        for h in range(4):
            e('v_mul_f32 v%d, v%d, v%d' % (60 + h, 56 + h, 20 + h))
        self.dpp_reduce('v_add_f32', [60, 61, 62, 63], full=False)
        for h in range(4):
            e('v_readlane_b32 s%d, v%d, 31' % (76 + h, 60 + h))
        for k in range(8):
            e('v_mov_b32 v%d, 0' % (64 + k))
        e('s_lshl_b32 s58, %s, 3' % S_W)
        for q in range(8):
            for h in range(4):
                e('v_readlane_b32 s%d, v%d, s58' % (80 + h, 56 + h))
            e('s_add_u32 s58, s58, 1')
            for c in range(2):
                for hp in range(2):
                    src = 24 + 4 * q + 2 * c + hp
                    self.unpack(10, 11, src)
                    e('v_fma_f32 v%d, s%d, v10, v%d' % (64 + 4 * c + 2 * hp, 80 + 2 * hp, 64 + 4 * c + 2 * hp))
                    e('v_fma_f32 v%d, s%d, v11, v%d' % (64 + 4 * c + 2 * hp + 1, 80 + 2 * hp + 1, 64 + 4 * c + 2 * hp + 1))
        e('v_lshlrev_b32 v8, 5, v0')
        e('ds_write_b128 v8, v[64:67] offset:%d' % L_AC)
        e('ds_write_b128 v8, v[68:71] offset:%d' % (L_AC + 16))
        e('s_waitcnt lgkmcnt(0)')
        e('s_barrier')
        e('v_lshlrev_b32 v8, 3, v0')
        for w in range(4):
            e('ds_read_b64 v[%d:%d], v8 offset:%d' % (16 + 2 * w, 17 + 2 * w, L_AC + 2048 * w))
        e('s_waitcnt lgkmcnt(0)')
        for k in range(2):
            e('v_add_f32 v%d, v%d, v%d' % (16 + k, 16 + k, 18 + k))
            e('v_add_f32 v%d, v%d, v%d' % (20 + k, 20 + k, 22 + k))
        for k in range(2):
            e('v_add_f32 v%d, v%d, v%d' % (16 + k, 16 + k, 20 + k))
        self.clamp([16, 17])
        self.pub_xo(16, S_LB)
        for k in range(8):
            e('v_mov_b32 v%d, s%d' % (24 + k, 72 + k))
        self.clamp(range(24, 32))
        self.pub_xs(24, S_LB)

    def p4(self):
        e = self.emit
        e('s_lshl_b32 s58, %s, 13' % S_X)
        e('s_lshl_b32 s59, %s, 8' % S_J)
        e('s_add_u32 s58, s58, s59')
        e('s_lshl_b32 s59, %s, 2' % S_W)
        e('s_add_u32 s58, s58, s59')
        e('s_add_u32 s58, s58, %s' % S_LB)
        e('s_add_u32 s58, s58, %d' % XO)
        e('s_add_u32 s59, s58, %d' % (4 * 8 * 8192))
        e('v_lshrrev_b32 v9, 4, v1')
        e('v_lshlrev_b32 v10, 16, v9')
        e('v_and_b32 v11, 15, v1')
        e('v_lshlrev_b32 v11, 4, v11')
        e('v_add_u32 v10, v10, v11')
        e('s_lshl_b32 s62, %s, 5' % S_X)
        e('s_lshl_b32 s63, %s, 2' % S_W)
        e('s_add_u32 s62, s62, s63')
        e('s_add_u32 s62, s62, %s' % S_LB)
        e('s_add_u32 s62, s62, %d' % XS)
        e('v_lshlrev_b32 v9, 8, v9')

        def loads():
            self.ld(16, 1, 10, 'WS', 's58', 0, True)
            self.ld(17, 1, 10, 'WS', 's59', 0, True)
            self.ld(18, 1, 9, 'WS', 's62', 0, True)
            self.ld(19, 1, 9, 'WS', 's62', 1024, True)
            self.ld(20, 1, 9, 'WS', 's62', 16, True)
            self.ld(21, 1, 9, 'WS', 's62', 1040, True)
        self.poll(loads, range(16, 22), 8)
        for b in range(2):
            e('v_mov_b32 v%d, v%d' % (22 + b, 18 + b))
        for b in range(2):
            self.xswap('v_max_f32', 22 + b, 24 + b, 16)
        for b in range(2):
            self.xswap('v_max_f32', 22 + b, 24 + b, 32)
        for b in range(2):
            e('v_sub_f32 v%d, v%d, v%d' % (18 + b, 18 + b, 22 + b))
        for b in range(2):
            e('v_exp_f32 v%d, v%d' % (18 + b, 18 + b))
        for b in range(2):
            e('v_mul_f32 v%d, v%d, v%d' % (16 + b, 16 + b, 18 + b))
            e('v_mul_f32 v%d, v%d, v%d' % (20 + b, 20 + b, 18 + b))
        for r in (16, 17, 20, 21):
            self.xswap('v_add_f32', r, 24, 16)
        for r in (16, 17, 20, 21):
            self.xswap('v_add_f32', r, 24, 32)
        for b in range(2):
            e('v_rcp_f32 v%d, v%d' % (22 + b, 20 + b))
        for b in range(2):
            e('v_mul_f32 v%d, v%d, v%d' % (16 + b, 16 + b, 22 + b))
        for b in range(2):
            for c in range(16):
                e('v_readlane_b32 s%d, v%d, %d' % (64 + 16 * b + c, 16 + b, c))
        for k in range(4):
            e('v_mov_b32 v%d, 0' % (24 + k))
        for c in range(16):
            e('v_accvgpr_read_b32 v28, a%d' % (A_WUV + c))
            self.unpack(29, 30, 28)
            for b in range(2):
                e('v_fma_f32 v%d, s%d, v29, v%d' % (24 + 2 * b, 64 + 16 * b + c, 24 + 2 * b))
                e('v_fma_f32 v%d, s%d, v30, v%d' % (25 + 2 * b, 64 + 16 * b + c, 25 + 2 * b))
        self.clamp(range(24, 28))
        self.pub_cp(24, 26, False, S_LB)

    def p5(self):
        e = self.emit
        e('s_lshl_b32 s58, %s, 6' % S_R)
        e('s_lshl_b32 s59, %s, 4' % S_W)
        e('s_add_u32 s58, s58, s59')
        e('s_add_u32 s58, s58, %s' % S_LB)
        e('s_add_u32 s58, s58, %d' % CP)
        e('v_and_b32 v9, 31, v1')
        e('v_lshlrev_b32 v9, 15, v9')
        e('v_lshrrev_b32 v10, 5, v1')
        e('v_lshlrev_b32 v10, 14, v10')
        e('v_add_u32 v9, v9, v10')
        self.poll(lambda: self.ld(16, 4, 9, 'WS', 's58', 0, True), range(16, 20), 8)
        self.dpp_reduce('v_add_f32', [16, 17, 18, 19], full=False)
        for k in range(4):
            self.bf16r(16 + k, 16 + k)
        e('v_lshrrev_b32 v9, 5, v1')
        e('v_lshlrev_b32 v9, 6, v9')
        e('s_lshl_b32 s58, %s, 4' % S_W)
        e('v_add_u32 v9, s58, v9')
        e('s_mov_b32 s60, 0x80000000')
        e('s_mov_b32 s61, 0x80000000')
        e('s_mov_b64 exec, s[60:61]')
        e('ds_write_b128 v9, v[16:19] offset:%d' % L_CT)
        e('s_mov_b64 exec, -1')
        e('s_waitcnt lgkmcnt(0)')
        e('s_barrier')
        e('v_mov_b32 v9, 0')
        for q in range(8):
            e('ds_read_b128 v[%d:%d], v9 offset:%d' % (32 + 4 * q, 35 + 4 * q, L_CT + 16 * q))
        for k in range(4):
            e('v_mov_b32 v%d, 0' % (24 + k))
        e('s_waitcnt lgkmcnt(0)')
        for d in range(16):
            e('v_accvgpr_read_b32 v28, a%d' % (A_WO + d))
            self.unpack(29, 30, 28)
            for b in range(2):
                e('v_fmac_f32 v%d, v%d, v29' % (24 + 2 * b, 32 + 16 * b + d))
                e('v_fmac_f32 v%d, v%d, v30' % (25 + 2 * b, 32 + 16 * b + d))
        self.clamp(range(24, 28))
        self.pub_po(PO, 24, 26, False, S_LB)

    def p6(self, src, dst, npart, lds):
        e = self.emit
        e('s_lshl_b32 s58, %s, 5' % S_X)
        e('s_lshl_b32 s59, %s, 3' % S_W)
        e('s_add_u32 s58, s58, s59')
        e('s_lshl_b32 s58, s58, 12')
        e('s_lshl_b32 s59, %s, 7' % S_J)
        e('s_add_u32 s58, s58, s59')
        e('s_add_u32 s58, s58, %s' % S_LB)
        e('s_add_u32 s58, s58, %d' % src)
        e('v_lshrrev_b32 v9, 3, v1')
        e('v_lshlrev_b32 v9, 12, v9')
        e('v_and_b32 v10, 7, v1')
        e('v_lshlrev_b32 v10, 4, v10')
        e('v_add_u32 v9, v9, v10')
        if npart < 32:
            for k in range(4):
                e('v_mov_b32 v%d, 0' % (16 + k))
            e('v_lshrrev_b32 v10, 3, v0')
            e('v_cmp_gt_u32 s[60:61], %d, v10' % npart)

        def loads():
            if npart < 32:
                e('s_mov_b64 exec, s[60:61]')
            self.ld(16, 4, 9, 'WS', 's58', 0, True)
            if npart < 32:
                e('s_mov_b64 exec, -1')
        self.poll(loads, range(16, 20), 8)
        for k in range(4):
            e('v_add_f32_dpp v%d, v%d, v%d row_ror:8 row_mask:0xf bank_mask:0xf' % (16 + k, 16 + k, 16 + k))
        for k in range(4):
            self.xswap('v_add_f32', 16 + k, 20 + k, 16)
        for k in range(4):
            self.xswap('v_add_f32', 16 + k, 20 + k, 32)
        e('s_lshl_b32 s58, %s, 7' % S_W)
        e('v_and_b32 v9, 7, v1')
        e('v_lshlrev_b32 v9, 4, v9')
        e('v_add_u32 v10, s58, v9')
        e('ds_write_b128 v10, v[16:19] offset:%d' % lds)
        e('s_waitcnt lgkmcnt(0)')
        e('s_barrier')
        for w in range(4):
            e('ds_read_b128 v[%d:%d], v9 offset:%d' % (16 + 4 * w, 19 + 4 * w, lds + 128 * w))
        e('s_waitcnt lgkmcnt(0)')
        for k in range(4):
            e('v_add_f32 v%d, v%d, v%d' % (16 + k, 16 + k, 20 + k))
            e('v_add_f32 v%d, v%d, v%d' % (24 + k, 24 + k, 28 + k))
        for k in range(4):
            e('v_add_f32 v%d, v%d, v%d' % (16 + k, 16 + k, 24 + k))
        self.clamp(range(16, 20))
        self.pub_xp(dst, 16, S_LB)

    def p7(self):
        e = self.emit
        skip = self.label('LS')
        e('s_cmp_ge_u32 %s, 28' % S_J)
        e('s_cbranch_scc1 %s' % skip)
        e('s_lshl_b32 s58, %s, 12' % S_W)
        e('s_lshl_b32 s59, %s, 8' % S_W)
        e('s_add_u32 s58, s58, s59')
        e('v_add_u32 v8, s58, v2')
        for rr in range(2):
            for b in range(2):
                e('ds_read_b32 v%d, v8 offset:%d' % (16 + 2 * rr + b, L_XN + b * 2048 + rr * 1024))
        for k in range(32):
            e('v_mov_b32 v%d, 0' % (32 + k))
        e('s_waitcnt lgkmcnt(0)')
        for mat, ab in enumerate((A_W1, A_W3)):
            for rr in range(2):
                for d in range(4):
                    e('v_accvgpr_read_b32 v24, a%d' % (ab + 4 * rr + d))
                    self.unpack(25, 26, 24)
                    for b in range(2):
                        a = 32 + 16 * mat + 8 * b + 2 * d
                        e('v_fmac_f32 v%d, v%d, v25' % (a, 16 + 2 * rr + b))
                        e('v_fmac_f32 v%d, v%d, v26' % (a + 1, 16 + 2 * rr + b))
        for k in range(16):
            e('v_permlane32_swap_b32 v%d, v%d' % (32 + k, 48 + k))
            e('v_add_f32 v%d, v%d, v%d' % (32 + k, 32 + k, 48 + k))
        for k in range(8):
            e('v_permlane16_swap_b32 v%d, v%d' % (32 + k, 40 + k))
            e('v_add_f32 v%d, v%d, v%d' % (32 + k, 32 + k, 40 + k))
        self.row_reduce('v_add_f32', list(range(32, 40)))
        e('v_lshrrev_b32 v9, 4, v1')
        e('v_lshlrev_b32 v9, 5, v9')
        e('s_lshl_b32 s58, %s, 7' % S_W)
        e('v_add_u32 v9, s58, v9')
        e('s_mov_b32 s60, 0x80008000')
        e('s_mov_b32 s61, 0x80008000')
        e('s_mov_b64 exec, s[60:61]')
        e('ds_write_b128 v9, v[32:35] offset:%d' % L_FR)
        e('ds_write_b128 v9, v[36:39] offset:%d' % (L_FR + 16))
        e('s_mov_b64 exec, -1')
        e('s_waitcnt lgkmcnt(0)')
        e('s_barrier')
        e('v_and_b32 v9, 15, v1')
        e('v_lshlrev_b32 v9, 2, v9')
        for w in range(4):
            e('ds_read_b32 v%d, v9 offset:%d' % (16 + w, L_FR + 128 * w))
            e('ds_read_b32 v%d, v9 offset:%d' % (20 + w, L_FR + 128 * w + 64))
        e('s_waitcnt lgkmcnt(0)')
        e('v_add_f32 v16, v16, v17')
        e('v_add_f32 v18, v18, v19')
        e('v_add_f32 v20, v20, v21')
        e('v_add_f32 v22, v22, v23')
        e('v_add_f32 v16, v16, v18')
        e('v_add_f32 v20, v20, v22')
        self.bf16r(16, 16)
        self.bf16r(20, 20)
        e('v_mul_f32 v17, %s, v16' % f32hex(-1.4426950408889634))
        e('v_exp_f32 v17, v17')
        e('v_add_f32 v17, 1.0, v17')
        e('v_rcp_f32 v17, v17')
        e('v_mul_f32 v17, v17, v16')
        self.bf16r(17, 17)
        e('v_mul_f32 v17, v17, v20')
        self.bf16r(17, 17)
        for k in range(16):
            e('v_readlane_b32 s%d, v17, %d' % (64 + k, k))
        for k in range(4):
            e('v_mov_b32 v%d, 0' % (24 + k))
        for f in range(8):
            e('v_accvgpr_read_b32 v28, a%d' % (A_W2 + f))
            self.unpack(29, 30, 28)
            for b in range(2):
                e('v_fma_f32 v%d, s%d, v29, v%d' % (24 + 2 * b, 64 + 8 * b + f, 24 + 2 * b))
                e('v_fma_f32 v%d, s%d, v30, v%d' % (25 + 2 * b, 64 + 8 * b + f, 25 + 2 * b))
        self.clamp(range(24, 28))
        self.pub_po(PO2, 24, 26, False, S_LB)
        self.place(skip)

    def final(self):
        e = self.emit
        e('s_cmp_lg_u32 %s, 0' % S_R)
        e('s_cbranch_scc1 L_END')
        self.gather_x(XP2, S_LB)
        e('v_cvt_pk_bf16_f32 v16, v4, v5')
        e('v_cvt_pk_bf16_f32 v17, v6, v7')
        e('v_lshlrev_b32 v8, 3, v0')
        self.st(16, 2, 8, 'OUT')

    def build(self):
        e = self.emit
        self.prologue()
        for L in range(2):
            if L == 0:
                self.flagwait()
                self.unpack(4, 5, 6)
                self.unpack(6, 7, 7)
            else:
                self.gather_x(XP2, S_LB)
                e('s_mov_b32 %s, 0x%x' % (S_LB, LAYER))
            self.layernorm()
            self.p1()
            self.pub_qp(16, False, S_LB)
            self.phase_end()
            self.p2()
            self.phase_end()
            self.p3(L == 0)
            self.phase_end()
            self.p3b()
            self.phase_end()
            self.p4()
            self.phase_end()
            if L == 0:
                for i in range(16, 20):
                    e('v_mov_b32 v%d, -1' % i)
                e('s_mov_b32 s99, 0x%x' % LAYER)
                self.clears('s99', True, True)
            self.p5()
            self.phase_end()
            self.p6(PO, XP, 32, L_R6)
            self.phase_end()
            self.gather_x(XP, S_LB)
            self.layernorm()
            self.p7()
            self.phase_end()
            self.p6(PO2, XP2, 28, L_R8)
            self.phase_end()
        self.final()
        self.place('L_END')
        e('s_endpgm')


def main():
    stop = None
    outp = 'interleave_layers__compressed_kv_cla__glu_gated_swiglu__decode.s'
    for a in sys.argv[1:]:
        if a.startswith('stop='):
            stop = int(a[5:])
        if a.startswith('out='):
            outp = a[4:]
    g = G(stop)
    g.build()
    ref = open('interleave_layers__compressed_kv_cla__glu_gated_swiglu__decode.s.ref').read()
    head = []
    for l in ref.split('\n'):
        if l.startswith('; @launch'):
            break
        head.append(l)
    s = '\n'.join(head) + '\n'
    s += '; @launch grid=(256,1,1) block=(256,1,1) lds=%d\n' % LDS_BYTES
    s += '.amdgcn_target "amdgcn-amd-amdhsa--gfx950"\n.text\n.globl %s\n.p2align 8\n.type %s,@function\n%s:\n' % (KNAME, KNAME, KNAME)
    s += g.text()
    s += '''.section .rodata,"a"
.p2align 6
.amdhsa_kernel %s
  .amdhsa_next_free_vgpr 344
  .amdhsa_next_free_sgpr 102
  .amdhsa_accum_offset 256
  .amdhsa_group_segment_fixed_size 0
  .amdhsa_kernarg_size 104
  .amdhsa_user_sgpr_count 2
  .amdhsa_user_sgpr_kernarg_segment_ptr 1
  .amdhsa_system_sgpr_workgroup_id_x 1
.end_amdhsa_kernel
''' % KNAME
    open(outp, 'w').write(s)


if __name__ == '__main__':
    main()
```

```python
import sys, os
sys.path.insert(0, os.path.dirname(os.path.abspath(__file__)))
from asmlib import Asm

KNAME = 'interleave_layers__compressed_kv_cla__glu_gated_swiglu__decode_kernel'

QP = 0x000000
QA = 0x020000
ST = 0x030000
XS = 0x040000
XO = 0x050000
XP = 0x0D0000
XP2 = 0x0E0000
CP = 0x100000
PO = 0x200000
PO2 = 0x300000
OP = 0x400000
QL = 0xC00000
LAYER = 0x1000000

L_CKV = 65536
L_XN = 0
L_AC = 0
L_XL = 16384
L_SX = 20480
L_RQ = 53248
L_QS = 55296
L_CT = 57344
L_R6 = 57600
L_FR = 58112
L_R8 = 58624
L_MD = 59136
L_MX = 59392
L_LW = 59904
L_PL = 60416
LDS_BYTES = 131072

S_WG, S_R, S_W, S_LB, S_BUD, S_MODE = 's2', 's3', 's4', 's5', 's6', 's7'
SRD = dict(X=8, CKV=12, WQ=16, WUK=20, WUV=24, WO=28, W1=32, W3=36, W2=40, OUT=44, DBG=48, WS=52)
S_X, S_J = 's56', 's57'


def srd(n):
    b = SRD[n]
    return 's[%d:%d]' % (b, b + 3)


def vr(a, n=1):
    return 'v%d' % a if n == 1 else 'v[%d:%d]' % (a, a + n - 1)


def ar(a, n=1):
    return 'a%d' % a if n == 1 else 'a[%d:%d]' % (a, a + n - 1)


A_WQ, A_WUK, A_WUV, A_WO, A_W1, A_W3, A_W2 = 0, 16, 32, 48, 64, 72, 80
V_LANE, V_L4, V_L16 = 1, 2, 3
V_XO = 4

SCALE = 0.08838834764831845 * 1.4426950408889634
import struct


def f32hex(x):
    return '0x%08x' % struct.unpack('<I', struct.pack('<f', x))[0]


WNAME = {1: 'dword', 2: 'dwordx2', 4: 'dwordx4'}


class G(Asm):
    def __init__(self, stop=None, prof=False):
        super().__init__()
        self.stop = stop
        self.phase_no = 0
        self.prof = prof
        self.tsnames = []

    def ld(self, dst, n, vaddr, buf, soff='0', imm=0, sc1=False, acc=False):
        d = ar(dst, n) if acc else vr(dst, n)
        t = 'buffer_load_%s %s, %s, %s, %s offen' % (WNAME[n], d, vr(vaddr), srd(buf), soff)
        if imm:
            assert 0 <= imm < 4096
            t += ' offset:%d' % imm
        if sc1:
            t += ' sc1'
        self.emit(t)

    def st(self, src, n, vaddr, buf, soff='0', imm=0, sc1=False):
        t = 'buffer_store_%s %s, %s, %s, %s offen' % (WNAME[n], vr(src, n), vr(vaddr), srd(buf), soff)
        if imm:
            assert 0 <= imm < 4096
            t += ' offset:%d' % imm
        if sc1:
            t += ' sc1'
        self.emit(t)

    def clamp(self, regs):
        for r in regs:
            self.emit('v_min_u32 v%d, -2, v%d' % (r, r))

    def local_stores(self, fn, clear=False):
        if clear:
            fn(True)
            return
        lf, le = self.label('LF'), self.label('LE')
        self.emit('s_cmp_eq_u32 %s, 1' % S_MODE)
        self.emit('s_cbranch_scc1 %s' % lf)
        fn(True)
        self.emit('s_branch %s' % le)
        self.place(lf)
        fn(False)
        self.place(le)

    def poll(self, loads, regs, tmp):
        l0, l1 = self.label('LP'), self.label('LD')
        self.place(l0)
        loads()
        self.emit('s_waitcnt vmcnt(0)')
        regs = list(regs)
        if len(regs) == 1:
            self.emit('v_mov_b32 v%d, v%d' % (tmp, regs[0]))
        elif len(regs) == 2:
            self.emit('v_max_u32 v%d, v%d, v%d' % (tmp, regs[0], regs[1]))
        else:
            self.emit('v_max3_u32 v%d, v%d, v%d, v%d' % (tmp, regs[0], regs[1], regs[2]))
            i = 3
            while i < len(regs):
                if i + 1 < len(regs):
                    self.emit('v_max3_u32 v%d, v%d, v%d, v%d' % (tmp, tmp, regs[i], regs[i + 1]))
                    i += 2
                else:
                    self.emit('v_max_u32 v%d, v%d, v%d' % (tmp, tmp, regs[i]))
                    i += 1
        self.emit('v_cmp_eq_u32 vcc, -1, v%d' % tmp)
        self.emit('s_cbranch_vccz %s' % l1)
        self.emit('s_cmp_eq_u32 %s, 0' % S_BUD)
        self.emit('s_cbranch_scc1 %s' % l1)
        self.emit('s_sub_u32 %s, %s, 1' % (S_BUD, S_BUD))
        self.emit('s_branch %s' % l0)
        self.place(l1)
        self.ts('poll')

    def dpp_reduce(self, op, regs, full=True):
        steps = ['row_shr:1', 'row_shr:2', 'row_shr:4', 'row_shr:8']
        for s in steps:
            for r in regs:
                self.emit('%s_dpp v%d, v%d, v%d %s row_mask:0xf bank_mask:0xf' % (op, r, r, r, s))
        for r in regs:
            self.emit('%s_dpp v%d, v%d, v%d row_bcast:15 row_mask:0xa bank_mask:0xf' % (op, r, r, r))
        if full:
            for r in regs:
                self.emit('%s_dpp v%d, v%d, v%d row_bcast:31 row_mask:0xc bank_mask:0xf' % (op, r, r, r))

    def row_reduce(self, op, regs):
        for s in ['row_shr:1', 'row_shr:2', 'row_shr:4', 'row_shr:8']:
            for r in regs:
                self.emit('%s_dpp v%d, v%d, v%d %s row_mask:0xf bank_mask:0xf' % (op, r, r, r, s))

    def bf16r(self, dst, src, tmp=None):
        self.emit('v_cvt_pk_bf16_f32 v%d, v%d, v%d' % (dst, src, src))
        self.emit('v_lshlrev_b32 v%d, 16, v%d' % (dst, dst))

    def unpack(self, lo, hi, src):
        self.emit('v_lshlrev_b32 v%d, 16, v%d' % (lo, src))
        self.emit('v_and_b32 v%d, 0xffff0000, v%d' % (hi, src))

    def xswap(self, op, r, t, which):
        self.emit('v_mov_b32 v%d, v%d' % (t, r))
        self.emit('v_permlane%d_swap_b32 v%d, v%d' % (which, r, t))
        self.emit('%s v%d, v%d, v%d' % (op, r, r, t))

    def ts(self, name):
        if not self.prof:
            return
        idx = len(self.tsnames)
        self.tsnames.append(name)
        skip = self.label('LT')
        self.emit('s_cmp_lg_u32 %s, 0' % S_W)
        self.emit('s_cbranch_scc1 %s' % skip)
        self.emit('s_memrealtime s[100:101]')
        self.emit('s_waitcnt lgkmcnt(0)')
        self.emit('v_mov_b32 v254, s100')
        self.emit('s_lshl_b32 s100, %s, 8' % S_R)
        self.emit('s_add_u32 s100, s100, 0x3000000')
        self.emit('v_mov_b32 v255, 0')
        self.emit('s_mov_b64 exec, 1')
        self.emit('buffer_store_dword v254, v255, %s, s100 offen offset:%d' % (srd('WS'), idx * 4))
        self.emit('s_mov_b64 exec, -1')
        self.place(skip)

    def phase_end(self):
        self.phase_no += 1
        self.ts('end%d' % self.phase_no)
        if self.stop is not None and self.phase_no == self.stop:
            self.emit('s_branch L_END')

    def pub_qp(self, data, clear, lb):
        skip = self.label('LS')
        self.emit('s_cmp_ge_u32 %s, 2' % S_W)
        self.emit('s_cbranch_scc1 %s' % skip)
        self.emit('s_and_b32 s58, %s, 3' % S_R)
        self.emit('s_lshl_b32 s58, s58, 1')
        self.emit('s_add_u32 s58, s58, %s' % S_W)
        self.emit('s_lshl_b32 s58, s58, 14')
        self.emit('s_lshr_b32 s59, %s, 2' % S_R)
        self.emit('s_lshl_b32 s59, s59, 8')
        self.emit('s_add_u32 s58, s58, s59')
        self.emit('s_add_u32 s58, s58, %s' % lb)
        self.local_stores(lambda sc: self.st(data, 1, V_L4, 'WS', 's58', QP, sc), clear)
        self.place(skip)

    def pub_qa(self, data, clear, lb):
        self.emit('s_and_b32 s58, %s, 7' % S_R)
        self.emit('s_lshl_b32 s58, s58, 1')
        self.emit('s_lshr_b32 s59, %s, 1' % S_W)
        self.emit('s_add_u32 s58, s58, s59')
        self.emit('s_lshl_b32 s58, s58, 11')
        self.emit('s_lshr_b32 s59, %s, 7' % S_R)
        self.emit('s_lshl_b32 s59, s59, 10')
        self.emit('s_add_u32 s58, s58, s59')
        self.emit('s_and_b32 s59, %s, 1' % S_W)
        self.emit('s_lshl_b32 s59, s59, 9')
        self.emit('s_add_u32 s58, s58, s59')
        self.emit('s_lshr_b32 s59, %s, 3' % S_R)
        self.emit('s_and_b32 s59, s59, 15')
        self.emit('s_lshl_b32 s59, s59, 4')
        self.emit('s_add_u32 s58, s58, s59')
        self.emit('s_add_u32 s58, s58, %s' % lb)
        self.emit('s_add_u32 s58, s58, %d' % QA)
        self.emit('v_and_b32 v8, 1, v%d' % V_LANE)
        self.emit('v_lshlrev_b32 v8, 15, v8')
        self.emit('v_lshrrev_b32 v9, 5, v%d' % V_LANE)
        self.emit('v_lshlrev_b32 v9, 8, v9')
        self.emit('v_add_u32 v8, v8, v9')
        self.emit('v_lshrrev_b32 v9, 4, v%d' % V_LANE)
        self.emit('v_and_b32 v9, 1, v9')
        self.emit('v_lshlrev_b32 v9, 3, v9')
        self.emit('v_add_u32 v8, v8, v9')
        self.emit('s_mov_b32 s60, 0x00030003')
        self.emit('s_mov_b32 s61, 0x00030003')
        self.emit('s_mov_b64 exec, s[60:61]')
        self.st(data, 2, 8, 'WS', 's58', 0, True)
        self.emit('s_mov_b64 exec, -1')

    def pub_ql(self, data, clear, lb):
        self.emit('s_lshl_b32 s58, %s, 10' % S_R)
        self.emit('s_add_u32 s58, s58, %s' % lb)
        self.emit('s_add_u32 s58, s58, %d' % QL)
        self.local_stores(lambda sc: self.st(data, 4, V_L16, 'WS', 's58', 0, sc), clear)

    def pub_op(self, datafn, clear, lb):
        self.emit('s_lshl_b32 s58, %s, 15' % S_R)
        self.emit('s_lshl_b32 s59, %s, 10' % S_W)
        self.emit('s_add_u32 s58, s58, s59')
        self.emit('s_add_u32 s58, s58, %s' % lb)
        self.emit('s_add_u32 s58, s58, %d' % OP)
        self.emit('s_add_u32 s59, s58, 8192')
        self.emit('s_add_u32 s62, s58, 16384')
        self.emit('s_add_u32 s63, s58, 24576')
        self.emit('v_lshrrev_b32 v8, 5, v%d' % V_LANE)
        self.emit('v_lshlrev_b32 v8, 12, v8')
        self.emit('v_and_b32 v9, 31, v%d' % V_LANE)
        self.emit('v_lshlrev_b32 v9, 3, v9')
        self.emit('v_add_u32 v8, v8, v9')
        so = ['s58', 's59', 's62', 's63']

        def f(sc):
            for nt in range(4):
                for g in range(4):
                    self.st(datafn(nt, g), 2, 8, 'WS', so[g], nt * 256, sc)
        self.local_stores(f, clear)

    def pub_st(self, data, clear, lb):
        skip = self.label('LS')
        self.emit('s_cmp_lg_u32 %s, 0' % S_W)
        self.emit('s_cbranch_scc1 %s' % skip)
        self.emit('s_lshr_b32 s58, %s, 7' % S_R)
        self.emit('s_lshl_b32 s58, s58, 15')
        self.emit('s_and_b32 s59, %s, 127' % S_R)
        self.emit('s_lshl_b32 s59, s59, 5')
        self.emit('s_add_u32 s58, s58, s59')
        self.emit('s_add_u32 s58, s58, %s' % lb)
        self.emit('s_add_u32 s58, s58, %d' % ST)
        self.emit('v_and_b32 v8, 31, v%d' % V_LANE)
        self.emit('v_lshrrev_b32 v9, 2, v8')
        self.emit('v_lshlrev_b32 v9, 12, v9')
        self.emit('v_and_b32 v8, 3, v8')
        self.emit('v_lshlrev_b32 v8, 2, v8')
        self.emit('v_add_u32 v8, v8, v9')
        self.emit('v_lshrrev_b32 v9, 5, v%d' % V_LANE)
        self.emit('v_lshlrev_b32 v9, 4, v9')
        self.emit('v_add_u32 v8, v8, v9')
        self.local_stores(lambda sc: self.st(data, 1, 8, 'WS', 's58', 0, sc), clear)
        self.place(skip)

    def pub_xo(self, data, lb):
        self.emit('s_lshl_b32 s58, %s, 11' % S_R)
        self.emit('s_add_u32 s58, s58, %s' % lb)
        self.emit('s_add_u32 s58, s58, %d' % XO)
        self.emit('v_lshlrev_b32 v8, 3, v0')
        self.st(data, 2, 8, 'WS', 's58', 0, True)

    def pub_xs(self, data, lb):
        skip = self.label('LS')
        self.emit('s_and_b32 s58, %s, 3' % S_J)
        self.emit('s_or_b32 s58, s58, %s' % S_W)
        self.emit('s_cmp_lg_u32 s58, 0')
        self.emit('s_cbranch_scc1 %s' % skip)
        self.emit('s_lshr_b32 s58, %s, 2' % S_R)
        self.emit('s_lshl_b32 s58, s58, 5')
        self.emit('s_add_u32 s58, s58, %s' % lb)
        self.emit('s_add_u32 s58, s58, %d' % XS)
        self.emit('v_mov_b32 v8, 0')
        self.emit('s_mov_b64 exec, 1')
        self.st(data, 4, 8, 'WS', 's58', 0, True)
        self.st(data + 4, 4, 8, 'WS', 's58', 16, True)
        self.emit('s_mov_b64 exec, -1')
        self.place(skip)

    def pub_cp(self, d0, d1, clear, lb):
        self.emit('s_lshl_b32 s58, %s, 15' % S_J)
        self.emit('s_lshl_b32 s59, %s, 2' % S_X)
        self.emit('s_add_u32 s59, s59, %s' % S_W)
        self.emit('s_lshl_b32 s59, s59, 9')
        self.emit('s_add_u32 s58, s58, s59')
        self.emit('s_add_u32 s58, s58, %s' % lb)
        self.emit('s_add_u32 s58, s58, %d' % CP)
        self.emit('s_add_u32 s59, s58, 16384')
        self.emit('v_lshlrev_b32 v8, 3, v%d' % V_LANE)

        def f(sc):
            self.st(d0, 2, 8, 'WS', 's58', 0, sc)
            self.st(d1, 2, 8, 'WS', 's59', 0, sc)
        self.local_stores(f, clear)

    def pub_po(self, base, d0, d1, clear, lb):
        self.emit('s_lshl_b32 s58, %s, 12' % S_R)
        self.emit('s_lshl_b32 s59, %s, 9' % S_W)
        self.emit('s_add_u32 s58, s58, s59')
        self.emit('s_add_u32 s58, s58, %s' % lb)
        self.emit('s_add_u32 s58, s58, %d' % base)
        self.emit('v_lshlrev_b32 v8, 3, v%d' % V_LANE)

        def f(sc):
            self.st(d0, 2, 8, 'WS', 's58', 0, sc)
            self.st(d1, 2, 8, 'WS', 's58', 2048, sc)
        self.local_stores(f, clear)

    def pub_xp(self, base, data, lb):
        skip = self.label('LS')
        self.emit('s_cmp_lg_u32 %s, 0' % S_W)
        self.emit('s_cbranch_scc1 %s' % skip)
        self.emit('s_lshl_b32 s58, %s, 7' % S_R)
        self.emit('s_add_u32 s58, s58, %s' % lb)
        self.emit('s_add_u32 s58, s58, %d' % base)
        self.emit('s_mov_b64 exec, 0xff')
        self.st(data, 4, V_L16, 'WS', 's58', 0, True)
        self.emit('s_mov_b64 exec, -1')
        self.place(skip)

    def clears(self, lb, early, late):
        if early:
            self.pub_qp(16, True, lb)
            self.pub_qa(16, True, lb)
            skip = self.label('LS')
            self.emit('s_cmp_lg_u32 %s, 0' % S_W)
            self.emit('s_cbranch_scc1 %s' % skip)
            self.pub_ql(16, True, lb)
            self.place(skip)
        if late:
            self.pub_st(16, True, lb)
            self.pub_xo(16, lb)
            for i in range(20, 24):
                self.emit('v_mov_b32 v%d, -1' % i)
            self.pub_xs(16, lb)
            self.pub_cp(16, 16, True, lb)
            self.pub_po(PO, 16, 16, True, lb)
            self.pub_xp(XP, 16, lb)
            self.pub_po(PO2, 16, 16, True, lb)
            self.pub_xp(XP2, 16, lb)

    def prologue(self):
        e = self.emit
        e('s_cmp_ge_u32 s2, 256')
        e('s_cbranch_scc1 L_END')
        e('s_load_dwordx16 s[64:79], s[0:1], 0')
        e('s_load_dwordx8 s[80:87], s[0:1], 64')
        e('s_load_dwordx2 s[88:89], s[0:1], 96')
        e('v_lshrrev_b32 v1, 6, v0')
        e('v_readfirstlane_b32 %s, v1' % S_W)
        e('v_and_b32 v1, 63, v0')
        e('v_lshlrev_b32 v2, 2, v1')
        e('v_lshlrev_b32 v3, 4, v1')
        e('s_and_b32 s58, s2, 7')
        e('s_lshl_b32 s58, s58, 5')
        e('s_lshr_b32 s59, s2, 3')
        e('s_or_b32 %s, s58, s59' % S_R)
        e('s_lshr_b32 %s, %s, 5' % (S_X, S_R))
        e('s_and_b32 %s, %s, 31' % (S_J, S_R))
        e('s_mov_b32 %s, 0' % S_LB)
        e('s_mov_b32 %s, 60000' % S_BUD)
        e('s_mov_b32 %s, 0' % S_MODE)
        e('s_waitcnt lgkmcnt(0)')
        ptrs = dict(X=(64, 2048), CKV=(66, 16777216), WQ=(68, 4194304), WUK=(70, 4194304), WUV=(72, 4194304),
                    WO=(74, 4194304), W1=(78, 1835008), W3=(80, 1835008), W2=(82, 1835008), OUT=(84, 2048),
                    DBG=(86, 256), WS=(88, 268435456))
        for n, (p, sz) in ptrs.items():
            b = SRD[n]
            e('s_mov_b32 s%d, s%d' % (b, p))
            e('s_and_b32 s%d, s%d, 0xffff' % (b + 1, p + 1))
            e('s_mov_b32 s%d, %d' % (b + 2, sz))
            e('s_mov_b32 s%d, 0x20000' % (b + 3))
        for i in range(16, 20):
            e('v_mov_b32 v%d, -1' % i)
        self.ts('start')
        self.clears(S_LB, True, False)
        nb = 0
        e('s_lshl_b32 s58, %s, 9' % S_W)
        e('v_lshlrev_b32 v8, 3, v1')
        self.ld(6, 2, 8, 'X', 's58'); nb += 1
        e('s_and_b32 s58, %s, 3' % S_R)
        e('s_lshl_b32 s58, s58, 2')
        e('s_add_u32 s58, s58, %s' % S_W)
        e('s_lshl_b32 s58, s58, 18')
        e('s_lshr_b32 s59, %s, 2' % S_R)
        e('s_lshl_b32 s59, s59, 7')
        e('s_add_u32 s58, s58, s59')
        e('v_lshrrev_b32 v8, 3, v1')
        e('v_lshlrev_b32 v8, 13, v8')
        e('v_and_b32 v9, 7, v1')
        e('v_lshlrev_b32 v9, 4, v9')
        e('v_add_u32 v8, v8, v9')
        for i in range(4):
            self.ld(A_WQ + 4 * i, 4, 8, 'WQ', 's58', acc=True); nb += 1
            if i < 3:
                e('s_add_u32 s58, s58, 65536')
        e('s_and_b32 s58, %s, 7' % S_R)
        e('s_lshl_b32 s58, s58, 2')
        e('s_add_u32 s58, s58, %s' % S_W)
        e('s_lshl_b32 s58, s58, 17')
        e('s_lshr_b32 s59, %s, 3' % S_R)
        e('s_lshl_b32 s59, s59, 8')
        e('s_add_u32 s58, s58, s59')
        e('v_and_b32 v8, 15, v1')
        e('v_lshlrev_b32 v8, 13, v8')
        e('v_lshrrev_b32 v9, 4, v1')
        e('v_lshlrev_b32 v9, 4, v9')
        e('v_add_u32 v8, v8, v9')
        for k in range(4):
            self.ld(A_WUK + 4 * k, 4, 8, 'WUK', 's58', 64 * k, acc=True); nb += 1
        lw0, ljoin = self.label('LW0'), self.label('LJ')
        self.heavy()
        e('s_waitcnt vmcnt(25)')
        e('s_barrier')
        e('s_cmp_lg_u32 %s, 0' % S_W)
        e('s_cbranch_scc1 %s' % ljoin)
        e('s_getreg_b32 s58, hwreg(HW_REG_XCC_ID)')
        e('s_and_b32 s58, s58, 15')
        e('s_add_u32 s58, s58, 1')
        e('v_mov_b32 v8, s58')
        e('v_mov_b32 v9, %s' % S_R)
        e('s_mov_b64 exec, 1')
        e('buffer_store_byte v8, v9, %s, 0 offen sc1' % srd('DBG'))
        e('s_mov_b64 exec, -1')
        self.ts('flagst')
        self.place(ljoin)
        self.bulk2()
        self.clears(S_LB, False, True)
        self.ts('issued')
        self.flagwait()
        self.ts('flag')

    def heavy(self):
        e = self.emit
        e('s_lshl_b32 s58, %s, 16' % S_R)
        e('s_lshl_b32 s59, %s, 14' % S_W)
        e('s_add_u32 s58, s58, s59')
        e('s_add_u32 s59, s59, %d' % L_CKV)
        for i in range(16):
            f = ((i & 3) << 2) | (i >> 2)
            e('v_xor_b32 v8, %d, v1' % f)
            e('v_lshlrev_b32 v8, 4, v8')
            e('s_mov_b32 m0, s59')
            e('buffer_load_dwordx4 v8, %s, s58 offen lds' % srd('CKV'))
            if i < 15:
                e('s_add_u32 s58, s58, 1024')
                e('s_add_u32 s59, s59, 1024')

    def bulk2(self):
        e = self.emit
        e('s_lshl_b32 s58, %s, 17' % S_J)
        e('s_lshl_b32 s59, %s, 2' % S_X)
        e('s_add_u32 s59, s59, %s' % S_W)
        e('s_lshl_b32 s59, s59, 8')
        e('s_add_u32 s58, s58, s59')
        for i in range(16):
            self.ld(A_WUV + i, 1, V_L4, 'WUV', 's58', acc=True)
            if i < 15:
                e('s_add_u32 s58, s58, 8192')
        e('s_lshl_b32 s58, %s, 14' % S_R)
        e('s_lshl_b32 s59, %s, 8' % S_W)
        e('s_add_u32 s58, s58, s59')
        for i in range(16):
            self.ld(A_WO + i, 1, V_L4, 'WO', 's58', (i & 3) * 1024, acc=True)
            if (i & 3) == 3 and i < 15:
                e('s_add_u32 s58, s58, 4096')
        skip = self.label('LS')
        e('s_cmp_ge_u32 %s, 28' % S_J)
        e('s_cbranch_scc1 %s' % skip)
        e('s_mul_i32 s62, %s, 28' % S_X)
        e('s_add_u32 s62, s62, %s' % S_J)
        e('s_lshl_b32 s58, s62, 4')
        e('s_mul_i32 s59, %s, %d' % (S_W, 64 * 3584))
        e('s_add_u32 s58, s58, s59')
        e('s_add_u32 s59, s58, %d' % (256 * 3584))
        e('s_movk_i32 s63, 3584')
        e('v_mul_lo_u32 v8, v1, s63')
        self.ld(A_W1, 4, 8, 'W1', 's58', acc=True)
        self.ld(A_W1 + 4, 4, 8, 'W1', 's59', acc=True)
        self.ld(A_W3, 4, 8, 'W3', 's58', acc=True)
        self.ld(A_W3 + 4, 4, 8, 'W3', 's59', acc=True)
        e('s_lshl_b32 s58, s62, 13')
        e('s_lshl_b32 s59, %s, 8' % S_W)
        e('s_add_u32 s58, s58, s59')
        for i in range(8):
            self.ld(A_W2 + i, 1, V_L4, 'W2', 's58', (i & 3) * 1024, acc=True)
            if i == 3:
                e('s_add_u32 s58, s58, 4096')
        self.place(skip)

    def flagwait(self):
        e = self.emit
        l0, l1 = self.label('LP'), self.label('LD')
        self.place(l0)
        self.ld(8, 1, V_L4, 'DBG', '0', 0, True)
        e('s_waitcnt vmcnt(0)')
        e('v_subrev_u32 v9, 0x01010101, v8')
        e('v_not_b32 v10, v8')
        e('v_and_b32 v9, v9, v10')
        e('v_and_b32 v9, 0x80808080, v9')
        e('v_cmp_ne_u32 vcc, 0, v9')
        e('s_cbranch_vccz %s' % l1)
        e('s_cmp_eq_u32 %s, 0' % S_BUD)
        e('s_cbranch_scc1 %s' % l1)
        e('s_sub_u32 %s, %s, 1' % (S_BUD, S_BUD))
        e('s_branch %s' % l0)
        self.place(l1)
        e('v_and_b32 v9, 0xff, v8')
        e('s_mov_b32 s58, 0x01010101')
        e('v_mul_lo_u32 v9, v9, s58')
        e('v_cmp_ne_u32 s[60:61], v9, v8')
        e('v_mov_b32 v10, v8')
        e('v_mov_b32_dpp v10, v8 row_shr:1 row_mask:0xf bank_mask:0xf')
        e('v_cmp_ne_u32 vcc, v10, v8')
        e('s_mov_b32 s58, 0xfefefefe')
        e('s_mov_b32 s59, 0xfefefefe')
        e('s_and_b64 vcc, vcc, s[58:59]')
        e('s_or_b64 vcc, vcc, s[60:61]')
        e('s_cmp_eq_u64 vcc, 0')
        e('s_cselect_b32 %s, 1, 0' % S_MODE)

    def gather_x(self, base, lb):
        e = self.emit
        e('s_lshl_b32 s58, %s, 10' % S_W)
        e('s_add_u32 s58, s58, %s' % lb)
        e('s_add_u32 s58, s58, %d' % base)
        for x in range(1, 8):
            e('s_add_u32 s%d, s58, %d' % (63 + x, 4096 * x))
        so = ['s58'] + ['s%d' % (63 + x) for x in range(1, 8)]

        def loads():
            for x in range(8):
                self.ld(16 + 4 * x, 4, V_L16, 'WS', so[x], 0, True)
        self.poll(loads, range(16, 48), 8)
        for k in range(4):
            e('v_add_f32 v%d, v%d, v%d' % (16 + k, 16 + k, 20 + k))
            e('v_add_f32 v%d, v%d, v%d' % (24 + k, 24 + k, 28 + k))
            e('v_add_f32 v%d, v%d, v%d' % (32 + k, 32 + k, 36 + k))
            e('v_add_f32 v%d, v%d, v%d' % (40 + k, 40 + k, 44 + k))
        for k in range(4):
            e('v_add_f32 v%d, v%d, v%d' % (16 + k, 16 + k, 24 + k))
            e('v_add_f32 v%d, v%d, v%d' % (32 + k, 32 + k, 40 + k))
        for k in range(4):
            e('v_add_f32 v%d, v%d, v%d' % (16 + k, 16 + k, 32 + k))
        for k in range(4):
            self.bf16r(16 + k, 16 + k)
        for k in range(4):
            e('v_add_f32 v%d, v%d, v%d' % (V_XO + k, V_XO + k, 16 + k))
        for k in range(4):
            self.bf16r(V_XO + k, V_XO + k)

    def layernorm(self):
        e = self.emit
        e('v_lshlrev_b32 v8, 4, v0')
        e('ds_write_b128 v8, v[4:7] offset:%d' % L_XL)
        e('s_waitcnt lgkmcnt(0)')
        e('s_barrier')
        e('v_lshlrev_b32 v8, 5, v1')
        e('ds_read_b128 v[16:19], v8 offset:%d' % L_XL)
        e('ds_read_b128 v[20:23], v8 offset:%d' % (L_XL + 16))
        e('ds_read_b128 v[24:27], v8 offset:%d' % (L_XL + 2048))
        e('ds_read_b128 v[28:31], v8 offset:%d' % (L_XL + 2064))
        e('s_waitcnt lgkmcnt(0)')
        for b in range(2):
            x0 = 16 + 8 * b
            s = 32 + b
            e('v_add_f32 v%d, v%d, v%d' % (s, x0, x0 + 1))
            for k in range(2, 8):
                e('v_add_f32 v%d, v%d, v%d' % (s, s, x0 + k))
        self.dpp_reduce('v_add_f32', [32, 33])
        e('v_readlane_b32 s58, v32, 63')
        e('v_readlane_b32 s59, v33, 63')
        e('v_mov_b32 v34, %s' % f32hex(1.0 / 512))
        e('v_mul_f32 v36, s58, v34')
        e('v_mul_f32 v37, s59, v34')
        for b in range(2):
            x0 = 16 + 8 * b
            s = 32 + b
            for k in range(8):
                e('v_sub_f32 v38, v%d, v%d' % (x0 + k, 36 + b))
                if k == 0:
                    e('v_mul_f32 v%d, v38, v38' % s)
                else:
                    e('v_fmac_f32 v%d, v38, v38' % s)
        self.dpp_reduce('v_add_f32', [32, 33])
        e('v_readlane_b32 s58, v32, 63')
        e('v_readlane_b32 s59, v33, 63')
        e('v_mul_f32 v32, s58, v34')
        e('v_mul_f32 v33, s59, v34')
        for b in range(2):
            self.bf16r(32 + b, 32 + b)
            e('v_add_f32 v%d, %s, v%d' % (32 + b, f32hex(1e-5), 32 + b))
            self.bf16r(32 + b, 32 + b)
            e('v_sqrt_f32 v%d, v%d' % (32 + b, 32 + b))
            self.bf16r(32 + b, 32 + b)
            e('v_rcp_f32 v%d, v%d' % (34 + b, 32 + b))
            self.bf16r(36 + b, 36 + b)
        for b in range(2):
            e('v_fma_f32 v38, -v%d, v%d, 2.0' % (32 + b, 34 + b))
            e('v_mul_f32 v%d, v%d, v38' % (34 + b, 34 + b))
        for b in range(2):
            x0 = 16 + 8 * b
            for k in range(8):
                e('v_sub_f32 v%d, v%d, v%d' % (x0 + k, x0 + k, 36 + b))
            for k in range(8):
                self.bf16r(x0 + k, x0 + k)
            for k in range(8):
                e('v_mul_f32 v%d, v%d, v%d' % (x0 + k, x0 + k, 34 + b))
            for k in range(8):
                self.bf16r(x0 + k, x0 + k)
        e('s_lshl_b32 s58, %s, 12' % S_W)
        e('v_add_u32 v8, s58, v8')
        e('ds_write_b128 v8, v[16:19] offset:%d' % L_XN)
        e('ds_write_b128 v8, v[20:23] offset:%d' % (L_XN + 16))
        e('ds_write_b128 v8, v[24:27] offset:%d' % (L_XN + 2048))
        e('ds_write_b128 v8, v[28:31] offset:%d' % (L_XN + 2064))
        e('s_waitcnt lgkmcnt(0)')

    def p1(self):
        e = self.emit
        e('s_and_b32 s58, %s, 3' % S_R)
        e('s_lshl_b32 s58, s58, 2')
        e('s_add_u32 s58, s58, %s' % S_W)
        e('s_lshl_b32 s58, s58, 7')
        e('s_lshl_b32 s59, %s, 12' % S_W)
        e('s_add_u32 s58, s58, s59')
        e('v_lshrrev_b32 v8, 3, v1')
        e('v_lshlrev_b32 v8, 2, v8')
        e('v_add_u32 v8, s58, v8')
        for i in range(4):
            for b in range(2):
                e('ds_read_b32 v%d, v8 offset:%d' % (16 + 2 * i + b, L_XN + b * 2048 + i * 32))
        for k in range(16):
            e('v_mov_b32 v%d, 0' % (32 + k))
        e('s_waitcnt lgkmcnt(0)')
        for i in range(4):
            for d in range(4):
                e('v_accvgpr_read_b32 v24, a%d' % (A_WQ + 4 * i + d))
                self.unpack(25, 26, 24)
                for b in range(2):
                    e('v_fmac_f32 v%d, v%d, v25' % (32 + 8 * b + 2 * d, 16 + 2 * i + b))
                    e('v_fmac_f32 v%d, v%d, v26' % (32 + 8 * b + 2 * d + 1, 16 + 2 * i + b))
        for k in range(8):
            e('v_permlane32_swap_b32 v%d, v%d' % (32 + k, 40 + k))
            e('v_add_f32 v%d, v%d, v%d' % (32 + k, 32 + k, 40 + k))
        for k in range(4):
            e('v_permlane16_swap_b32 v%d, v%d' % (32 + k, 36 + k))
            e('v_add_f32 v%d, v%d, v%d' % (32 + k, 32 + k, 36 + k))
        for k in range(4):
            e('v_add_f32_dpp v%d, v%d, v%d row_ror:8 row_mask:0xf bank_mask:0xf' % (32 + k, 32 + k, 32 + k))
        e('v_and_b32 v8, 7, v1')
        e('v_lshlrev_b32 v8, 5, v8')
        e('v_lshrrev_b32 v9, 4, v1')
        e('v_and_b32 v9, 1, v9')
        e('v_lshlrev_b32 v9, 4, v9')
        e('v_add_u32 v8, v8, v9')
        e('v_lshrrev_b32 v9, 5, v1')
        e('v_lshlrev_b32 v9, 8, v9')
        e('v_add_u32 v8, v8, v9')
        e('s_lshl_b32 s58, %s, 9' % S_W)
        e('v_add_u32 v8, s58, v8')
        e('ds_write_b128 v8, v[32:35] offset:%d' % L_RQ)
        e('s_waitcnt lgkmcnt(0)')
        e('s_barrier')
        e('s_and_b32 s58, %s, 1' % S_W)
        e('s_lshl_b32 s58, s58, 8')
        e('v_add_u32 v8, s58, v2')
        for w in range(4):
            e('ds_read_b32 v%d, v8 offset:%d' % (16 + w, L_RQ + 512 * w))
        e('s_waitcnt lgkmcnt(0)')
        e('v_add_f32 v16, v16, v17')
        e('v_add_f32 v18, v18, v19')
        e('v_add_f32 v16, v16, v18')
        self.clamp([16])

    def p2(self):
        e = self.emit
        e('s_lshr_b32 s58, %s, 3' % S_R)
        e('s_lshl_b32 s58, s58, 9')
        e('s_add_u32 s58, s58, %s' % S_LB)
        e('s_add_u32 s58, s58, %d' % QP)
        e('s_add_u32 s59, s58, 32768')
        e('s_add_u32 s62, s58, 65536')
        e('s_add_u32 s63, s58, 98304')
        e('v_lshrrev_b32 v9, 5, v1')
        e('v_lshlrev_b32 v9, 14, v9')
        e('v_and_b32 v10, 31, v1')
        e('v_lshlrev_b32 v10, 4, v10')
        e('v_add_u32 v9, v9, v10')
        so = ['s58', 's59', 's62', 's63']

        def loads():
            for ks in range(4):
                self.ld(16 + 4 * ks, 4, 9, 'WS', so[ks], 0, True)
        self.poll(loads, range(16, 32), 8)
        for k in range(4):
            e('v_add_f32 v%d, v%d, v%d' % (16 + k, 16 + k, 20 + k))
            e('v_add_f32 v%d, v%d, v%d' % (24 + k, 24 + k, 28 + k))
        for k in range(4):
            e('v_add_f32 v%d, v%d, v%d' % (16 + k, 16 + k, 24 + k))
        e('v_cvt_pk_bf16_f32 v20, v16, v17')
        e('v_cvt_pk_bf16_f32 v21, v18, v19')
        e('s_lshl_b32 s58, %s, 9' % S_W)
        e('v_lshlrev_b32 v8, 3, v1')
        e('v_add_u32 v8, s58, v8')
        e('ds_write_b64 v8, v[20:21] offset:%d' % L_QS)
        e('v_and_b32 v8, 1, v1')
        e('v_lshlrev_b32 v8, 8, v8')
        e('v_lshrrev_b32 v9, 4, v1')
        e('v_lshlrev_b32 v9, 4, v9')
        e('v_add_u32 v8, v8, v9')
        e('v_add_u32 v8, s58, v8')
        e('s_waitcnt lgkmcnt(0)')
        for k in range(4):
            e('ds_read_b128 v[%d:%d], v8 offset:%d' % (24 + 4 * k, 27 + 4 * k, L_QS + 64 * k))
        for k in range(4):
            e('v_mov_b32 v%d, 0' % (16 + k))
        e('s_waitcnt lgkmcnt(0)')
        for k in range(4):
            e('v_mfma_f32_16x16x32_bf16 v[16:19], a[%d:%d], v[%d:%d], v[16:19]' % (A_WUK + 4 * k, A_WUK + 4 * k + 3, 24 + 4 * k, 27 + 4 * k))
        e('s_mov_b32 s58, %s' % f32hex(SCALE))
        for k in range(4):
            e('v_mul_f32 v%d, s58, v%d' % (16 + k, 16 + k))
        e('v_cvt_pk_bf16_f32 v20, v16, v17')
        e('v_cvt_pk_bf16_f32 v21, v18, v19')
        self.clamp([20, 21])
        self.pub_qa(20, False, S_LB)

    def p2b(self):
        e = self.emit
        skip = self.label('LS')
        e('s_cmp_lg_u32 %s, 0' % S_W)
        e('s_cbranch_scc1 %s' % skip)
        e('s_lshr_b32 s58, %s, 2' % S_X)
        e('s_lshl_b32 s58, s58, 15')
        e('s_lshl_b32 s59, %s, 10' % S_J)
        e('s_add_u32 s58, s58, s59')
        e('s_add_u32 s58, s58, %s' % S_LB)
        e('s_add_u32 s58, s58, %d' % QA)
        self.poll(lambda: self.ld(16, 4, V_L16, 'WS', 's58', 0, True), range(16, 20), 8)
        self.pub_ql(16, False, S_LB)
        self.place(skip)

    def p3(self, first):
        e = self.emit
        AC = 112
        PF = 16
        TMP = 64
        AO = 128
        CF = 192
        ADR = 224
        e('s_lshl_b32 s58, %s, 15' % S_X)
        e('s_lshl_b32 s59, %s, 13' % S_W)
        e('s_add_u32 s58, s58, s59')
        e('s_add_u32 s58, s58, %s' % S_LB)
        e('s_add_u32 s58, s58, %d' % QL)
        e('s_add_u32 s62, s58, 4096')

        def loads():
            for q in range(8):
                self.ld(16 + 4 * q, 4, V_L16, 'WS', 's58' if q < 4 else 's62', (q & 3) * 1024, True)
        self.poll(loads, range(16, 48), 8)
        e('v_add_u32 v8, s59, v3')
        for q in range(8):
            e('ds_write_b128 v8, v[%d:%d] offset:%d' % (16 + 4 * q, 19 + 4 * q, L_SX + 1024 * q))
        e('v_and_b32 v8, 3, v1')
        e('v_lshlrev_b32 v8, 2, v8')
        e('v_lshrrev_b32 v9, 2, v1')
        e('v_and_b32 v9, 3, v9')
        e('v_or_b32 v8, v8, v9')
        e('v_lshrrev_b32 v9, 4, v1')
        e('v_xor_b32 v8, v8, v9')
        e('v_lshlrev_b32 v8, 4, v8')
        e('v_and_b32 v9, 15, v1')
        e('v_lshlrev_b32 v9, 10, v9')
        e('v_or_b32 v8, v8, v9')
        e('s_lshl_b32 s58, %s, 14' % S_W)
        e('s_or_b32 s58, s58, %d' % L_CKV)
        e('v_or_b32 v8, s58, v8')
        for q in range(4):
            e('v_xor_b32 v%d, %d, v8' % (ADR + q, q << 6))
        e('s_waitcnt lgkmcnt(0)')
        e('s_barrier')

        def issue(g):
            base = 16 + 24 * (g & 1)
            for u in range(2):
                kk = 2 * g + u
                e('ds_read_b128 v[%d:%d], v%d offset:%d' % (base + 12 * u, base + 12 * u + 3, ADR + (kk & 3), (kk >> 2) * 256))
                e('ds_read_b128 v[%d:%d], v3 offset:%d' % (base + 12 * u + 4, base + 12 * u + 7, L_SX + kk * 2048))
                e('ds_read_b128 v[%d:%d], v3 offset:%d' % (base + 12 * u + 8, base + 12 * u + 11, L_SX + kk * 2048 + 1024))
        issue(0)
        for g in range(8):
            if g < 7:
                issue(g + 1)
                e('s_waitcnt lgkmcnt(6)')
            else:
                e('s_waitcnt lgkmcnt(0)')
            base = 16 + 24 * (g & 1)
            for u in range(2):
                for ht in range(2):
                    c = '0' if (g == 0 and u == 0) else 'v[%d:%d]' % (AC + 4 * ht, AC + 4 * ht + 3)
                    e('v_mfma_f32_16x16x32_bf16 v[%d:%d], v[%d:%d], v[%d:%d], %s' % (
                        AC + 4 * ht, AC + 4 * ht + 3, base + 12 * u, base + 12 * u + 3,
                        base + 12 * u + 4 + 4 * ht, base + 12 * u + 7 + 4 * ht, c))
        e('v_and_b32 v8, 15, v1')
        e('v_lshlrev_b32 v8, 4, v8')
        e('s_lshl_b32 s58, %s, 2' % S_W)
        e('v_add_u32 v9, s58, v8')
        for ht in range(2):
            e('v_max3_f32 v%d, v%d, v%d, v%d' % (10 + ht, AC + 4 * ht, AC + 4 * ht + 1, AC + 4 * ht + 2))
        for ht in range(2):
            e('v_max_f32 v%d, v%d, v%d' % (10 + ht, 10 + ht, AC + 4 * ht + 3))
        for ht in range(2):
            self.xswap('v_max_f32', 10 + ht, 12 + ht, 16)
        for ht in range(2):
            self.xswap('v_max_f32', 10 + ht, 12 + ht, 32)
        for ht in range(2):
            e('ds_write_b32 v9, v%d offset:%d' % (10 + ht, L_MX + 256 * ht))
        e('s_waitcnt lgkmcnt(0)')
        e('s_barrier')
        for ht in range(2):
            e('ds_read_b128 v[%d:%d], v8 offset:%d' % (16 + 4 * ht, 19 + 4 * ht, L_MX + 256 * ht))
        e('v_and_b32 v14, 15, v1')
        e('v_mul_u32_u24 v14, 144, v14')
        e('v_lshrrev_b32 v15, 4, v1')
        e('v_lshlrev_b32 v15, 3, v15')
        e('v_add_u32 v14, v14, v15')
        e('s_lshl_b32 s58, %s, 5' % S_W)
        e('v_add_u32 v14, s58, v14')
        e('s_waitcnt lgkmcnt(0)')
        for ht in range(2):
            e('v_max3_f32 v%d, v%d, v%d, v%d' % (10 + ht, 16 + 4 * ht, 17 + 4 * ht, 18 + 4 * ht))
        for ht in range(2):
            e('v_max_f32 v%d, v%d, v%d' % (10 + ht, 10 + ht, 19 + 4 * ht))
        for ht in range(2):
            for i in range(4):
                e('v_sub_f32 v%d, v%d, v%d' % (AC + 4 * ht + i, AC + 4 * ht + i, 10 + ht))
        for k in range(8):
            e('v_exp_f32 v%d, v%d' % (AC + k, AC + k))
        for ht in range(2):
            e('v_cvt_pk_bf16_f32 v%d, v%d, v%d' % (16 + 2 * ht, AC + 4 * ht, AC + 4 * ht + 1))
            e('v_cvt_pk_bf16_f32 v%d, v%d, v%d' % (17 + 2 * ht, AC + 4 * ht + 2, AC + 4 * ht + 3))
        for ht in range(2):
            e('ds_write_b64 v14, v[%d:%d] offset:%d' % (16 + 2 * ht, 17 + 2 * ht, L_PL + 16 * 144 * ht))
        for ht in range(2):
            e('v_add_f32 v%d, v%d, v%d' % (10 + ht, AC + 4 * ht, AC + 4 * ht + 1))
            e('v_add_f32 v%d, v%d, v%d' % (12 + ht, AC + 4 * ht + 2, AC + 4 * ht + 3))
        for ht in range(2):
            e('v_add_f32 v%d, v%d, v%d' % (10 + ht, 10 + ht, 12 + ht))
        for ht in range(2):
            self.xswap('v_add_f32', 10 + ht, 12 + ht, 16)
        for ht in range(2):
            self.xswap('v_add_f32', 10 + ht, 12 + ht, 32)
        for ht in range(2):
            e('ds_write_b32 v9, v%d offset:%d' % (10 + ht, L_LW + 256 * ht))
        e('v_and_b32 v9, 15, v1')
        e('v_lshrrev_b32 v9, 2, v9')
        e('v_lshrrev_b32 v11, 5, v1')
        e('v_lshlrev_b32 v8, 3, v11')
        e('v_add_u32 v8, v8, v9')
        e('v_lshlrev_b32 v8, 10, v8')
        e('v_lshlrev_b32 v9, 6, v9')
        e('v_or_b32 v8, v8, v9')
        e('v_lshrrev_b32 v9, 4, v1')
        e('v_xor_b32 v9, v9, v11')
        e('v_and_b32 v9, 1, v9')
        e('v_lshlrev_b32 v9, 5, v9')
        e('v_or_b32 v8, v8, v9')
        e('v_and_b32 v9, 2, v1')
        e('v_lshlrev_b32 v9, 3, v9')
        e('v_or_b32 v8, v8, v9')
        e('v_and_b32 v9, 1, v1')
        e('v_lshlrev_b32 v9, 3, v9')
        e('v_or_b32 v8, v8, v9')
        e('s_lshl_b32 s58, %s, 8' % S_W)
        e('s_or_b32 s58, s58, %d' % L_CKV)
        e('v_or_b32 v8, s58, v8')
        for nt in range(4):
            for j in range(2):
                e('v_xor_b32 v%d, 0x%x, v8' % (ADR + 2 * nt + j, (nt << 6) | (j * 0x1010)))
        e('v_and_b32 v9, 31, v1')
        e('v_mul_u32_u24 v9, 144, v9')
        e('v_lshlrev_b32 v11, 4, v11')
        e('v_add_u32 v9, v9, v11')
        e('s_waitcnt lgkmcnt(0)')
        e('s_barrier')
        for ks in range(4):
            e('ds_read_b128 v[%d:%d], v9 offset:%d' % (PF + 4 * ks, PF + 4 * ks + 3, L_PL + 32 * ks))
        for kstep in range(4):
            for nt in range(4):
                for j in range(2):
                    e('ds_read_b64_tr_b16 v[%d:%d], v%d offset:%d' % (CF + 4 * nt + 2 * j + 16 * (kstep & 1), CF + 4 * nt + 2 * j + 1 + 16 * (kstep & 1), ADR + 2 * nt + j, kstep * 16384))
            for nt in range(4):
                e('s_waitcnt lgkmcnt(%d)' % (6 - 2 * nt))
                c = '0' if kstep == 0 else 'v[%d:%d]' % (AO + 16 * nt, AO + 16 * nt + 15)
                e('v_mfma_f32_32x32x16_bf16 v[%d:%d], v[%d:%d], v[%d:%d], %s' % (
                    AO + 16 * nt, AO + 16 * nt + 15, PF + 4 * kstep, PF + 4 * kstep + 3,
                    CF + 4 * nt + 16 * (kstep & 1), CF + 4 * nt + 3 + 16 * (kstep & 1), c))
        e('v_and_b32 v8, 31, v1')
        e('v_lshlrev_b32 v8, 4, v8')
        e('ds_read_b128 v[32:35], v8 offset:%d' % L_MX)
        e('ds_read_b128 v[36:39], v8 offset:%d' % L_LW)
        for nt in range(4):
            for g in range(4):
                a = AO + 16 * nt + 4 * g
                d = TMP + 8 * nt + 2 * g
                e('v_cvt_pk_bf16_f32 v%d, v%d, v%d' % (d, a, a + 1))
                e('v_cvt_pk_bf16_f32 v%d, v%d, v%d' % (d + 1, a + 2, a + 3))
        self.pub_op(lambda nt, g: TMP + 8 * nt + 2 * g, False, S_LB)
        e('s_waitcnt lgkmcnt(0)')
        e('v_max3_f32 v10, v32, v33, v34')
        e('v_max_f32 v10, v10, v35')
        e('v_add_f32 v12, v36, v37')
        e('v_add_f32 v13, v38, v39')
        e('v_add_f32 v12, v12, v13')
        e('v_cmp_gt_u32 vcc, 32, v1')
        e('v_cndmask_b32 v13, v12, v10, vcc')
        self.clamp([13])
        e('s_waitcnt vmcnt(0)')
        e('s_barrier')
        self.pub_st(13, False, S_LB)

    def p3b(self):
        e = self.emit
        e('s_lshr_b32 s58, %s, 2' % S_X)
        e('s_lshl_b32 s58, s58, 3')
        e('s_lshr_b32 s59, %s, 2' % S_J)
        e('s_add_u32 s58, s58, s59')
        e('s_lshl_b32 s58, s58, 12')
        e('s_and_b32 s62, %s, 3' % S_X)
        e('s_lshl_b32 s62, s62, 10')
        e('s_add_u32 s58, s58, s62')
        e('s_add_u32 s58, s58, %s' % S_LB)
        e('s_add_u32 s58, s58, %d' % ST)
        e('v_and_b32 v9, 31, v1')
        e('v_lshlrev_b32 v9, 5, v9')
        e('s_lshl_b32 s62, %s, 5' % S_X)
        e('s_lshl_b32 s63, %s, 3' % S_W)
        e('s_add_u32 s62, s62, s63')
        e('s_lshl_b32 s62, s62, 15')
        e('s_lshl_b32 s59, s59, 12')
        e('s_add_u32 s62, s62, s59')
        e('s_and_b32 s59, %s, 3' % S_J)
        e('s_lshl_b32 s59, s59, 10')
        e('s_add_u32 s62, s62, s59')
        e('s_add_u32 s62, s62, %s' % S_LB)
        e('s_add_u32 s64, s62, %d' % OP)
        for q in range(1, 8):
            e('s_add_u32 s%d, s64, %d' % (64 + q, 32768 * q))

        def loads():
            self.ld(16, 4, 9, 'WS', 's58', 0, True)
            self.ld(20, 4, 9, 'WS', 's58', 16, True)
        self.poll(loads, range(16, 24), 8)
        for q in range(8):
            self.ld(24 + 4 * q, 4, V_L16, 'WS', 's%d' % (64 + q), 0, True)
        for h in range(4):
            e('v_mov_b32 v%d, v%d' % (56 + h, 16 + h))
        self.dpp_reduce('v_max_f32', [56, 57, 58, 59])
        for h in range(4):
            e('v_readlane_b32 s%d, v%d, 63' % (72 + h, 56 + h))
        for h in range(4):
            e('v_subrev_f32 v%d, s%d, v%d' % (56 + h, 72 + h, 16 + h))
        for h in range(4):
            e('v_exp_f32 v%d, v%d' % (56 + h, 56 + h))
        for h in range(4):
            e('v_mul_f32 v%d, v%d, v%d' % (60 + h, 56 + h, 20 + h))
        self.dpp_reduce('v_add_f32', [60, 61, 62, 63], full=False)
        for h in range(4):
            e('v_readlane_b32 s%d, v%d, 31' % (76 + h, 60 + h))
        for k in range(8):
            e('v_mov_b32 v%d, 0' % (64 + k))
        e('s_lshl_b32 s58, %s, 3' % S_W)
        for q in range(8):
            e('s_waitcnt vmcnt(%d)' % (7 - q))
            for h in range(4):
                e('v_readlane_b32 s%d, v%d, s58' % (80 + h, 56 + h))
            e('s_add_u32 s58, s58, 1')
            for c in range(2):
                for hp in range(2):
                    src = 24 + 4 * q + 2 * c + hp
                    self.unpack(10, 11, src)
                    e('v_fma_f32 v%d, s%d, v10, v%d' % (64 + 4 * c + 2 * hp, 80 + 2 * hp, 64 + 4 * c + 2 * hp))
                    e('v_fma_f32 v%d, s%d, v11, v%d' % (64 + 4 * c + 2 * hp + 1, 80 + 2 * hp + 1, 64 + 4 * c + 2 * hp + 1))
        e('v_lshlrev_b32 v8, 5, v0')
        e('ds_write_b128 v8, v[64:67] offset:%d' % L_AC)
        e('ds_write_b128 v8, v[68:71] offset:%d' % (L_AC + 16))
        e('s_waitcnt lgkmcnt(0)')
        e('s_barrier')
        e('v_lshlrev_b32 v8, 3, v0')
        for w in range(4):
            e('ds_read_b64 v[%d:%d], v8 offset:%d' % (16 + 2 * w, 17 + 2 * w, L_AC + 2048 * w))
        e('s_waitcnt lgkmcnt(0)')
        for k in range(2):
            e('v_add_f32 v%d, v%d, v%d' % (16 + k, 16 + k, 18 + k))
            e('v_add_f32 v%d, v%d, v%d' % (20 + k, 20 + k, 22 + k))
        for k in range(2):
            e('v_add_f32 v%d, v%d, v%d' % (16 + k, 16 + k, 20 + k))
        self.clamp([16, 17])
        self.pub_xo(16, S_LB)
        for k in range(8):
            e('v_mov_b32 v%d, s%d' % (24 + k, 72 + k))
        self.clamp(range(24, 32))
        self.pub_xs(24, S_LB)

    def p4(self):
        e = self.emit
        e('s_lshl_b32 s58, %s, 13' % S_X)
        e('s_lshl_b32 s59, %s, 8' % S_J)
        e('s_add_u32 s58, s58, s59')
        e('s_lshl_b32 s59, %s, 2' % S_W)
        e('s_add_u32 s58, s58, s59')
        e('s_add_u32 s58, s58, %s' % S_LB)
        e('s_add_u32 s58, s58, %d' % XO)
        e('s_add_u32 s59, s58, %d' % (4 * 8 * 8192))
        e('v_lshrrev_b32 v9, 4, v1')
        e('v_lshlrev_b32 v10, 16, v9')
        e('v_and_b32 v11, 15, v1')
        e('v_lshlrev_b32 v11, 4, v11')
        e('v_add_u32 v10, v10, v11')
        e('s_lshl_b32 s62, %s, 5' % S_X)
        e('s_lshl_b32 s63, %s, 2' % S_W)
        e('s_add_u32 s62, s62, s63')
        e('s_add_u32 s62, s62, %s' % S_LB)
        e('s_add_u32 s62, s62, %d' % XS)
        e('v_lshlrev_b32 v9, 8, v9')

        def loads():
            self.ld(16, 1, 10, 'WS', 's58', 0, True)
            self.ld(17, 1, 10, 'WS', 's59', 0, True)
            self.ld(18, 1, 9, 'WS', 's62', 0, True)
            self.ld(19, 1, 9, 'WS', 's62', 1024, True)
            self.ld(20, 1, 9, 'WS', 's62', 16, True)
            self.ld(21, 1, 9, 'WS', 's62', 1040, True)
        self.poll(loads, range(16, 22), 8)
        for b in range(2):
            e('v_mov_b32 v%d, v%d' % (22 + b, 18 + b))
        for b in range(2):
            self.xswap('v_max_f32', 22 + b, 24 + b, 16)
        for b in range(2):
            self.xswap('v_max_f32', 22 + b, 24 + b, 32)
        for b in range(2):
            e('v_sub_f32 v%d, v%d, v%d' % (18 + b, 18 + b, 22 + b))
        for b in range(2):
            e('v_exp_f32 v%d, v%d' % (18 + b, 18 + b))
        for b in range(2):
            e('v_mul_f32 v%d, v%d, v%d' % (16 + b, 16 + b, 18 + b))
            e('v_mul_f32 v%d, v%d, v%d' % (20 + b, 20 + b, 18 + b))
        for r in (16, 17, 20, 21):
            self.xswap('v_add_f32', r, 24, 16)
        for r in (16, 17, 20, 21):
            self.xswap('v_add_f32', r, 24, 32)
        for b in range(2):
            e('v_rcp_f32 v%d, v%d' % (22 + b, 20 + b))
        for b in range(2):
            e('v_mul_f32 v%d, v%d, v%d' % (16 + b, 16 + b, 22 + b))
        for b in range(2):
            for c in range(16):
                e('v_readlane_b32 s%d, v%d, %d' % (64 + 16 * b + c, 16 + b, c))
        for k in range(4):
            e('v_mov_b32 v%d, 0' % (24 + k))
        for c in range(16):
            e('v_accvgpr_read_b32 v28, a%d' % (A_WUV + c))
            self.unpack(29, 30, 28)
            for b in range(2):
                e('v_fma_f32 v%d, s%d, v29, v%d' % (24 + 2 * b, 64 + 16 * b + c, 24 + 2 * b))
                e('v_fma_f32 v%d, s%d, v30, v%d' % (25 + 2 * b, 64 + 16 * b + c, 25 + 2 * b))
        self.clamp(range(24, 28))
        self.pub_cp(24, 26, False, S_LB)

    def p5(self):
        e = self.emit
        e('s_lshl_b32 s58, %s, 6' % S_R)
        e('s_lshl_b32 s59, %s, 4' % S_W)
        e('s_add_u32 s58, s58, s59')
        e('s_add_u32 s58, s58, %s' % S_LB)
        e('s_add_u32 s58, s58, %d' % CP)
        e('v_and_b32 v9, 31, v1')
        e('v_lshlrev_b32 v9, 15, v9')
        e('v_lshrrev_b32 v10, 5, v1')
        e('v_lshlrev_b32 v10, 14, v10')
        e('v_add_u32 v9, v9, v10')
        self.poll(lambda: self.ld(16, 4, 9, 'WS', 's58', 0, True), range(16, 20), 8)
        self.dpp_reduce('v_add_f32', [16, 17, 18, 19], full=False)
        for k in range(4):
            self.bf16r(16 + k, 16 + k)
        e('v_lshrrev_b32 v9, 5, v1')
        e('v_lshlrev_b32 v9, 6, v9')
        e('s_lshl_b32 s58, %s, 4' % S_W)
        e('v_add_u32 v9, s58, v9')
        e('s_mov_b32 s60, 0x80000000')
        e('s_mov_b32 s61, 0x80000000')
        e('s_mov_b64 exec, s[60:61]')
        e('ds_write_b128 v9, v[16:19] offset:%d' % L_CT)
        e('s_mov_b64 exec, -1')
        e('s_waitcnt lgkmcnt(0)')
        e('s_barrier')
        e('v_mov_b32 v9, 0')
        for q in range(8):
            e('ds_read_b128 v[%d:%d], v9 offset:%d' % (32 + 4 * q, 35 + 4 * q, L_CT + 16 * q))
        for k in range(4):
            e('v_mov_b32 v%d, 0' % (24 + k))
        e('s_waitcnt lgkmcnt(0)')
        for d in range(16):
            e('v_accvgpr_read_b32 v28, a%d' % (A_WO + d))
            self.unpack(29, 30, 28)
            for b in range(2):
                e('v_fmac_f32 v%d, v%d, v29' % (24 + 2 * b, 32 + 16 * b + d))
                e('v_fmac_f32 v%d, v%d, v30' % (25 + 2 * b, 32 + 16 * b + d))
        self.clamp(range(24, 28))
        self.pub_po(PO, 24, 26, False, S_LB)

    def p6(self, src, dst, npart, lds):
        e = self.emit
        e('s_lshl_b32 s58, %s, 5' % S_X)
        e('s_lshl_b32 s59, %s, 3' % S_W)
        e('s_add_u32 s58, s58, s59')
        e('s_lshl_b32 s58, s58, 12')
        e('s_lshl_b32 s59, %s, 7' % S_J)
        e('s_add_u32 s58, s58, s59')
        e('s_add_u32 s58, s58, %s' % S_LB)
        e('s_add_u32 s58, s58, %d' % src)
        e('v_lshrrev_b32 v9, 3, v1')
        e('v_lshlrev_b32 v9, 12, v9')
        e('v_and_b32 v10, 7, v1')
        e('v_lshlrev_b32 v10, 4, v10')
        e('v_add_u32 v9, v9, v10')
        if npart < 32:
            for k in range(4):
                e('v_mov_b32 v%d, 0' % (16 + k))
            e('v_lshrrev_b32 v10, 3, v0')
            e('v_cmp_gt_u32 s[60:61], %d, v10' % npart)

        def loads():
            if npart < 32:
                e('s_mov_b64 exec, s[60:61]')
            self.ld(16, 4, 9, 'WS', 's58', 0, True)
            if npart < 32:
                e('s_mov_b64 exec, -1')
        self.poll(loads, range(16, 20), 8)
        for k in range(4):
            e('v_add_f32_dpp v%d, v%d, v%d row_ror:8 row_mask:0xf bank_mask:0xf' % (16 + k, 16 + k, 16 + k))
        for k in range(4):
            self.xswap('v_add_f32', 16 + k, 20 + k, 16)
        for k in range(4):
            self.xswap('v_add_f32', 16 + k, 20 + k, 32)
        e('s_lshl_b32 s58, %s, 7' % S_W)
        e('v_and_b32 v9, 7, v1')
        e('v_lshlrev_b32 v9, 4, v9')
        e('v_add_u32 v10, s58, v9')
        e('ds_write_b128 v10, v[16:19] offset:%d' % lds)
        e('s_waitcnt lgkmcnt(0)')
        e('s_barrier')
        for w in range(4):
            e('ds_read_b128 v[%d:%d], v9 offset:%d' % (16 + 4 * w, 19 + 4 * w, lds + 128 * w))
        e('s_waitcnt lgkmcnt(0)')
        for k in range(4):
            e('v_add_f32 v%d, v%d, v%d' % (16 + k, 16 + k, 20 + k))
            e('v_add_f32 v%d, v%d, v%d' % (24 + k, 24 + k, 28 + k))
        for k in range(4):
            e('v_add_f32 v%d, v%d, v%d' % (16 + k, 16 + k, 24 + k))
        self.clamp(range(16, 20))
        self.pub_xp(dst, 16, S_LB)

    def p7(self):
        e = self.emit
        skip = self.label('LS')
        e('s_cmp_ge_u32 %s, 28' % S_J)
        e('s_cbranch_scc1 %s' % skip)
        e('s_lshl_b32 s58, %s, 12' % S_W)
        e('s_lshl_b32 s59, %s, 8' % S_W)
        e('s_add_u32 s58, s58, s59')
        e('v_add_u32 v8, s58, v2')
        for rr in range(2):
            for b in range(2):
                e('ds_read_b32 v%d, v8 offset:%d' % (16 + 2 * rr + b, L_XN + b * 2048 + rr * 1024))
        for k in range(32):
            e('v_mov_b32 v%d, 0' % (32 + k))
        e('s_waitcnt lgkmcnt(0)')
        for mat, ab in enumerate((A_W1, A_W3)):
            for rr in range(2):
                for d in range(4):
                    e('v_accvgpr_read_b32 v24, a%d' % (ab + 4 * rr + d))
                    self.unpack(25, 26, 24)
                    for b in range(2):
                        a = 32 + 16 * mat + 8 * b + 2 * d
                        e('v_fmac_f32 v%d, v%d, v25' % (a, 16 + 2 * rr + b))
                        e('v_fmac_f32 v%d, v%d, v26' % (a + 1, 16 + 2 * rr + b))
        for k in range(16):
            e('v_permlane32_swap_b32 v%d, v%d' % (32 + k, 48 + k))
            e('v_add_f32 v%d, v%d, v%d' % (32 + k, 32 + k, 48 + k))
        for k in range(8):
            e('v_permlane16_swap_b32 v%d, v%d' % (32 + k, 40 + k))
            e('v_add_f32 v%d, v%d, v%d' % (32 + k, 32 + k, 40 + k))
        self.row_reduce('v_add_f32', list(range(32, 40)))
        e('v_lshrrev_b32 v9, 4, v1')
        e('v_lshlrev_b32 v9, 5, v9')
        e('s_lshl_b32 s58, %s, 7' % S_W)
        e('v_add_u32 v9, s58, v9')
        e('s_mov_b32 s60, 0x80008000')
        e('s_mov_b32 s61, 0x80008000')
        e('s_mov_b64 exec, s[60:61]')
        e('ds_write_b128 v9, v[32:35] offset:%d' % L_FR)
        e('ds_write_b128 v9, v[36:39] offset:%d' % (L_FR + 16))
        e('s_mov_b64 exec, -1')
        e('s_waitcnt lgkmcnt(0)')
        e('s_barrier')
        e('v_and_b32 v9, 15, v1')
        e('v_lshlrev_b32 v9, 2, v9')
        for w in range(4):
            e('ds_read_b32 v%d, v9 offset:%d' % (16 + w, L_FR + 128 * w))
            e('ds_read_b32 v%d, v9 offset:%d' % (20 + w, L_FR + 128 * w + 64))
        e('s_waitcnt lgkmcnt(0)')
        e('v_add_f32 v16, v16, v17')
        e('v_add_f32 v18, v18, v19')
        e('v_add_f32 v20, v20, v21')
        e('v_add_f32 v22, v22, v23')
        e('v_add_f32 v16, v16, v18')
        e('v_add_f32 v20, v20, v22')
        self.bf16r(16, 16)
        self.bf16r(20, 20)
        e('v_mul_f32 v17, %s, v16' % f32hex(-1.4426950408889634))
        e('v_exp_f32 v17, v17')
        e('v_add_f32 v17, 1.0, v17')
        e('v_rcp_f32 v17, v17')
        e('v_mul_f32 v17, v17, v16')
        self.bf16r(17, 17)
        e('v_mul_f32 v17, v17, v20')
        self.bf16r(17, 17)
        for k in range(16):
            e('v_readlane_b32 s%d, v17, %d' % (64 + k, k))
        for k in range(4):
            e('v_mov_b32 v%d, 0' % (24 + k))
        for f in range(8):
            e('v_accvgpr_read_b32 v28, a%d' % (A_W2 + f))
            self.unpack(29, 30, 28)
            for b in range(2):
                e('v_fma_f32 v%d, s%d, v29, v%d' % (24 + 2 * b, 64 + 8 * b + f, 24 + 2 * b))
                e('v_fma_f32 v%d, s%d, v30, v%d' % (25 + 2 * b, 64 + 8 * b + f, 25 + 2 * b))
        self.clamp(range(24, 28))
        self.pub_po(PO2, 24, 26, False, S_LB)
        self.place(skip)

    def final(self):
        e = self.emit
        e('s_cmp_lg_u32 %s, 0' % S_R)
        e('s_cbranch_scc1 L_END')
        self.gather_x(XP2, S_LB)
        e('v_cvt_pk_bf16_f32 v16, v4, v5')
        e('v_cvt_pk_bf16_f32 v17, v6, v7')
        e('v_lshlrev_b32 v8, 3, v0')
        self.st(16, 2, 8, 'OUT')

    def build(self):
        e = self.emit
        self.prologue()
        for L in range(2):
            if L == 0:
                self.unpack(4, 5, 6)
                self.unpack(6, 7, 7)
            else:
                self.gather_x(XP2, S_LB)
                e('s_mov_b32 %s, 0x%x' % (S_LB, LAYER))
            self.layernorm()
            self.p1()
            self.pub_qp(16, False, S_LB)
            self.phase_end()
            self.p2()
            self.phase_end()
            self.p2b()
            self.p3(L == 0)
            self.phase_end()
            self.p3b()
            self.phase_end()
            self.p4()
            self.phase_end()
            if L == 0:
                for i in range(16, 20):
                    e('v_mov_b32 v%d, -1' % i)
                e('s_mov_b32 s99, 0x%x' % LAYER)
                self.clears('s99', True, True)
            self.p5()
            self.phase_end()
            self.p6(PO, XP, 32, L_R6)
            self.phase_end()
            self.gather_x(XP, S_LB)
            self.layernorm()
            self.p7()
            self.phase_end()
            self.p6(PO2, XP2, 28, L_R8)
            self.phase_end()
        self.final()
        self.place('L_END')
        e('s_endpgm')


def main():
    stop = None
    outp = 'interleave_layers__compressed_kv_cla__glu_gated_swiglu__decode.s'
    for a in sys.argv[1:]:
        if a.startswith('stop='):
            stop = int(a[5:])
        if a.startswith('out='):
            outp = a[4:]
    prof = any(a == 'prof' for a in sys.argv[1:])
    g = G(stop, prof)
    g.build()
    if prof:
        open(outp + '.ts', 'w').write('\n'.join(g.tsnames))
    ref = open('interleave_layers__compressed_kv_cla__glu_gated_swiglu__decode.s.ref').read()
    head = []
    for l in ref.split('\n'):
        if l.startswith('; @launch'):
            break
        head.append(l)
    s = '\n'.join(head) + '\n'
    s += '; @launch grid=(256,1,1) block=(256,1,1) lds=%d\n' % LDS_BYTES
    s += '.amdgcn_target "amdgcn-amd-amdhsa--gfx950"\n.text\n.globl %s\n.p2align 8\n.type %s,@function\n%s:\n' % (KNAME, KNAME, KNAME)
    s += g.text()
    s += '''.section .rodata,"a"
.p2align 6
.amdhsa_kernel %s
  .amdhsa_next_free_vgpr 344
  .amdhsa_next_free_sgpr 102
  .amdhsa_accum_offset 256
  .amdhsa_group_segment_fixed_size 0
  .amdhsa_kernarg_size 104
  .amdhsa_user_sgpr_count 2
  .amdhsa_user_sgpr_kernarg_segment_ptr 1
  .amdhsa_system_sgpr_workgroup_id_x 1
.end_amdhsa_kernel
''' % KNAME
    open(outp, 'w').write(s)


if __name__ == '__main__':
    main()
```

```python
import sys, os
sys.path.insert(0, os.path.dirname(os.path.abspath(__file__)))
from asmlib import Asm

KNAME = 'interleave_layers__compressed_kv_cla__glu_gated_swiglu__decode_kernel'

QP = 0x000000
QA = 0x020000
ST = 0x030000
XS = 0x040000
XO = 0x050000
XP = 0x0D0000
XP2 = 0x0E0000
CP = 0x100000
PO = 0x200000
PO2 = 0x300000
OP = 0x400000
QL = 0xC00000
LAYER = 0x1000000

L_CKV = 65536
L_XN = 0
L_AC = 0
L_XL = 16384
L_SX = 20480
L_RQ = 53248
L_QS = 55296
L_CT = 57344
L_R6 = 57600
L_FR = 58112
L_R8 = 58624
L_XN2 = L_XN
L_XL2 = L_XL
L_MD = 59136
L_MX = 59392
L_LW = 59904
L_PL = 60416
LDS_BYTES = 131072

S_WG, S_R, S_W, S_LB, S_BUD, S_MODE = 's2', 's3', 's4', 's5', 's6', 's7'
SRD = dict(X=8, CKV=12, WQ=16, WUK=20, WUV=24, WO=28, W1=32, W3=36, W2=40, OUT=44, DBG=48, WS=52)
S_X, S_J = 's56', 's57'


def srd(n):
    b = SRD[n]
    return 's[%d:%d]' % (b, b + 3)


def vr(a, n=1):
    return 'v%d' % a if n == 1 else 'v[%d:%d]' % (a, a + n - 1)


def ar(a, n=1):
    return 'a%d' % a if n == 1 else 'a[%d:%d]' % (a, a + n - 1)


A_WQ, A_WUK = 0, 16
A_WUV, A_WO, A_W1, A_W3, A_W2 = 0, 16, 32, 40, 48
V_LANE, V_L4, V_L16 = 1, 2, 3
V_XO = 4

SCALE = 0.08838834764831845 * 1.4426950408889634
import struct


def f32hex(x):
    return '0x%08x' % struct.unpack('<I', struct.pack('<f', x))[0]


SKIP = set(os.environ.get('SKIP', '').split(','))
WNAME = {1: 'dword', 2: 'dwordx2', 4: 'dwordx4'}


class G(Asm):
    def __init__(self, stop=None, prof=False):
        super().__init__()
        self.stop = stop
        self.phase_no = 0
        self.prof = prof
        self.tsnames = []
        self.nbar = 0

    def emit(self, text):
        if text.strip() == 's_barrier':
            self.nbar += 1
        super().emit(text)

    __call__ = emit

    def idle_barriers(self, n):
        for _ in range(n):
            self.emit('s_barrier')

    def ld(self, dst, n, vaddr, buf, soff='0', imm=0, sc1=False, acc=False):
        if buf in SKIP:
            return
        d = ar(dst, n) if acc else vr(dst, n)
        t = 'buffer_load_%s %s, %s, %s, %s offen' % (WNAME[n], d, vr(vaddr), srd(buf), soff)
        if imm:
            assert 0 <= imm < 4096
            t += ' offset:%d' % imm
        if sc1:
            t += ' sc1'
        self.emit(t)

    def st(self, src, n, vaddr, buf, soff='0', imm=0, sc1=False):
        t = 'buffer_store_%s %s, %s, %s, %s offen' % (WNAME[n], vr(src, n), vr(vaddr), srd(buf), soff)
        if imm:
            assert 0 <= imm < 4096
            t += ' offset:%d' % imm
        if sc1:
            t += ' sc1'
        self.emit(t)

    def clamp(self, regs):
        for r in regs:
            self.emit('v_min_u32 v%d, -2, v%d' % (r, r))

    def local_stores(self, fn, clear=False):
        if clear:
            fn(True)
            return
        lf, le = self.label('LF'), self.label('LE')
        self.emit('s_cmp_eq_u32 %s, 1' % S_MODE)
        self.emit('s_cbranch_scc1 %s' % lf)
        fn(True)
        self.emit('s_branch %s' % le)
        self.place(lf)
        fn(False)
        self.place(le)

    def poll(self, loads, regs, tmp):
        l0, l1 = self.label('LP'), self.label('LD')
        self.place(l0)
        loads()
        self.emit('s_waitcnt vmcnt(0)')
        regs = list(regs)
        if len(regs) == 1:
            self.emit('v_mov_b32 v%d, v%d' % (tmp, regs[0]))
        elif len(regs) == 2:
            self.emit('v_max_u32 v%d, v%d, v%d' % (tmp, regs[0], regs[1]))
        else:
            self.emit('v_max3_u32 v%d, v%d, v%d, v%d' % (tmp, regs[0], regs[1], regs[2]))
            i = 3
            while i < len(regs):
                if i + 1 < len(regs):
                    self.emit('v_max3_u32 v%d, v%d, v%d, v%d' % (tmp, tmp, regs[i], regs[i + 1]))
                    i += 2
                else:
                    self.emit('v_max_u32 v%d, v%d, v%d' % (tmp, tmp, regs[i]))
                    i += 1
        self.emit('v_cmp_eq_u32 vcc, -1, v%d' % tmp)
        self.emit('s_cbranch_vccz %s' % l1)
        self.emit('s_cmp_eq_u32 %s, 0' % S_BUD)
        self.emit('s_cbranch_scc1 %s' % l1)
        self.emit('s_sub_u32 %s, %s, 1' % (S_BUD, S_BUD))
        self.emit('s_branch %s' % l0)
        self.place(l1)
        self.ts('poll')

    def dpp_reduce(self, op, regs, full=True):
        steps = ['row_shr:1', 'row_shr:2', 'row_shr:4', 'row_shr:8']
        for s in steps:
            for r in regs:
                self.emit('%s_dpp v%d, v%d, v%d %s row_mask:0xf bank_mask:0xf' % (op, r, r, r, s))
        for r in regs:
            self.emit('%s_dpp v%d, v%d, v%d row_bcast:15 row_mask:0xa bank_mask:0xf' % (op, r, r, r))
        if full:
            for r in regs:
                self.emit('%s_dpp v%d, v%d, v%d row_bcast:31 row_mask:0xc bank_mask:0xf' % (op, r, r, r))

    def row_reduce(self, op, regs):
        for s in ['row_shr:1', 'row_shr:2', 'row_shr:4', 'row_shr:8']:
            for r in regs:
                self.emit('%s_dpp v%d, v%d, v%d %s row_mask:0xf bank_mask:0xf' % (op, r, r, r, s))

    def bf16r(self, dst, src, tmp=None):
        self.emit('v_cvt_pk_bf16_f32 v%d, v%d, v%d' % (dst, src, src))
        self.emit('v_lshlrev_b32 v%d, 16, v%d' % (dst, dst))

    def unpack(self, lo, hi, src):
        self.emit('v_lshlrev_b32 v%d, 16, v%d' % (lo, src))
        self.emit('v_and_b32 v%d, 0xffff0000, v%d' % (hi, src))

    def xswap(self, op, r, t, which):
        self.emit('v_mov_b32 v%d, v%d' % (t, r))
        self.emit('v_permlane%d_swap_b32 v%d, v%d' % (which, r, t))
        self.emit('%s v%d, v%d, v%d' % (op, r, r, t))

    def ts(self, name):
        if not self.prof:
            return
        idx = len(self.tsnames)
        self.tsnames.append(name)
        skip = self.label('LT')
        self.emit('s_cmp_lg_u32 %s, 0' % S_W)
        self.emit('s_cbranch_scc1 %s' % skip)
        self.emit('s_memrealtime s[100:101]')
        self.emit('s_waitcnt lgkmcnt(0)')
        self.emit('v_mov_b32 v190, s100')
        self.emit('s_lshl_b32 s100, %s, 8' % S_R)
        self.emit('s_add_u32 s100, s100, 0x3000000')
        self.emit('v_mov_b32 v191, 0')
        self.emit('s_mov_b64 exec, 1')
        self.emit('buffer_store_dword v190, v191, %s, s100 offen offset:%d' % (srd('WS'), idx * 4))
        self.emit('s_mov_b64 exec, -1')
        self.place(skip)

    def phase_end(self):
        self.phase_no += 1
        self.ts('end%d' % self.phase_no)
        if self.stop is not None and self.phase_no == self.stop:
            self.emit('s_branch L_END')

    def pub_qp(self, data, clear, lb):
        skip = self.label('LS')
        self.emit('s_cmp_ge_u32 %s, 2' % S_W)
        self.emit('s_cbranch_scc1 %s' % skip)
        self.emit('s_and_b32 s58, %s, 3' % S_R)
        self.emit('s_lshl_b32 s58, s58, 1')
        self.emit('s_add_u32 s58, s58, %s' % S_W)
        self.emit('s_lshl_b32 s58, s58, 14')
        self.emit('s_lshr_b32 s59, %s, 2' % S_R)
        self.emit('s_lshl_b32 s59, s59, 8')
        self.emit('s_add_u32 s58, s58, s59')
        self.emit('s_add_u32 s58, s58, %s' % lb)
        self.local_stores(lambda sc: self.st(data, 1, V_L4, 'WS', 's58', QP, sc), clear)
        self.place(skip)

    def pub_qa(self, data, clear, lb):
        self.emit('s_and_b32 s58, %s, 7' % S_R)
        self.emit('s_lshl_b32 s58, s58, 1')
        self.emit('s_lshr_b32 s59, %s, 1' % S_W)
        self.emit('s_add_u32 s58, s58, s59')
        self.emit('s_lshl_b32 s58, s58, 11')
        self.emit('s_lshr_b32 s59, %s, 7' % S_R)
        self.emit('s_lshl_b32 s59, s59, 10')
        self.emit('s_add_u32 s58, s58, s59')
        self.emit('s_and_b32 s59, %s, 1' % S_W)
        self.emit('s_lshl_b32 s59, s59, 9')
        self.emit('s_add_u32 s58, s58, s59')
        self.emit('s_lshr_b32 s59, %s, 3' % S_R)
        self.emit('s_and_b32 s59, s59, 15')
        self.emit('s_lshl_b32 s59, s59, 4')
        self.emit('s_add_u32 s58, s58, s59')
        self.emit('s_add_u32 s58, s58, %s' % lb)
        self.emit('s_add_u32 s58, s58, %d' % QA)
        self.emit('v_and_b32 v8, 1, v%d' % V_LANE)
        self.emit('v_lshlrev_b32 v8, 15, v8')
        self.emit('v_lshrrev_b32 v9, 5, v%d' % V_LANE)
        self.emit('v_lshlrev_b32 v9, 8, v9')
        self.emit('v_add_u32 v8, v8, v9')
        self.emit('v_lshrrev_b32 v9, 4, v%d' % V_LANE)
        self.emit('v_and_b32 v9, 1, v9')
        self.emit('v_lshlrev_b32 v9, 3, v9')
        self.emit('v_add_u32 v8, v8, v9')
        self.emit('s_mov_b32 s60, 0x00030003')
        self.emit('s_mov_b32 s61, 0x00030003')
        self.emit('s_mov_b64 exec, s[60:61]')
        self.st(data, 2, 8, 'WS', 's58', 0, True)
        self.emit('s_mov_b64 exec, -1')

    def pub_ql(self, data, clear, lb):
        self.emit('s_lshl_b32 s58, %s, 10' % S_R)
        self.emit('s_add_u32 s58, s58, %s' % lb)
        self.emit('s_add_u32 s58, s58, %d' % QL)
        self.local_stores(lambda sc: self.st(data, 4, V_L16, 'WS', 's58', 0, sc), clear)

    def pub_op(self, datafn, clear, lb):
        self.emit('s_lshl_b32 s58, %s, 15' % S_R)
        self.emit('s_lshl_b32 s59, %s, 10' % S_W)
        self.emit('s_add_u32 s58, s58, s59')
        self.emit('s_add_u32 s58, s58, %s' % lb)
        self.emit('s_add_u32 s58, s58, %d' % OP)
        self.emit('s_add_u32 s59, s58, 8192')
        self.emit('s_add_u32 s62, s58, 16384')
        self.emit('s_add_u32 s63, s58, 24576')
        self.emit('v_lshrrev_b32 v8, 5, v%d' % V_LANE)
        self.emit('v_lshlrev_b32 v8, 12, v8')
        self.emit('v_and_b32 v9, 31, v%d' % V_LANE)
        self.emit('v_lshlrev_b32 v9, 3, v9')
        self.emit('v_add_u32 v8, v8, v9')
        so = ['s58', 's59', 's62', 's63']

        def f(sc):
            for nt in range(4):
                for g in range(4):
                    self.st(datafn(nt, g), 2, 8, 'WS', so[g], nt * 256, sc)
        self.local_stores(f, clear)

    def pub_st(self, data, clear, lb):
        skip = self.label('LS')
        self.emit('s_cmp_lg_u32 %s, 0' % S_W)
        self.emit('s_cbranch_scc1 %s' % skip)
        self.emit('s_lshr_b32 s58, %s, 7' % S_R)
        self.emit('s_lshl_b32 s58, s58, 15')
        self.emit('s_and_b32 s59, %s, 127' % S_R)
        self.emit('s_lshl_b32 s59, s59, 5')
        self.emit('s_add_u32 s58, s58, s59')
        self.emit('s_add_u32 s58, s58, %s' % lb)
        self.emit('s_add_u32 s58, s58, %d' % ST)
        self.emit('v_and_b32 v8, 31, v%d' % V_LANE)
        self.emit('v_lshrrev_b32 v9, 2, v8')
        self.emit('v_lshlrev_b32 v9, 12, v9')
        self.emit('v_and_b32 v8, 3, v8')
        self.emit('v_lshlrev_b32 v8, 2, v8')
        self.emit('v_add_u32 v8, v8, v9')
        self.emit('v_lshrrev_b32 v9, 5, v%d' % V_LANE)
        self.emit('v_lshlrev_b32 v9, 4, v9')
        self.emit('v_add_u32 v8, v8, v9')
        self.local_stores(lambda sc: self.st(data, 1, 8, 'WS', 's58', 0, sc), clear)
        self.place(skip)

    def pub_xo(self, data, lb):
        self.emit('s_lshl_b32 s58, %s, 11' % S_R)
        self.emit('s_add_u32 s58, s58, %s' % lb)
        self.emit('s_add_u32 s58, s58, %d' % XO)
        self.emit('v_lshlrev_b32 v8, 3, v0')
        self.st(data, 2, 8, 'WS', 's58', 0, True)

    def pub_xs(self, data, lb):
        skip = self.label('LS')
        self.emit('s_and_b32 s58, %s, 3' % S_J)
        self.emit('s_or_b32 s58, s58, %s' % S_W)
        self.emit('s_cmp_lg_u32 s58, 0')
        self.emit('s_cbranch_scc1 %s' % skip)
        self.emit('s_lshr_b32 s58, %s, 2' % S_R)
        self.emit('s_lshl_b32 s58, s58, 5')
        self.emit('s_add_u32 s58, s58, %s' % lb)
        self.emit('s_add_u32 s58, s58, %d' % XS)
        self.emit('v_mov_b32 v8, 0')
        self.emit('s_mov_b64 exec, 1')
        self.st(data, 4, 8, 'WS', 's58', 0, True)
        self.st(data + 4, 4, 8, 'WS', 's58', 16, True)
        self.emit('s_mov_b64 exec, -1')
        self.place(skip)

    def pub_cp(self, d0, d1, clear, lb):
        self.emit('s_lshl_b32 s58, %s, 15' % S_J)
        self.emit('s_lshl_b32 s59, %s, 2' % S_X)
        self.emit('s_add_u32 s59, s59, %s' % S_W)
        self.emit('s_lshl_b32 s59, s59, 9')
        self.emit('s_add_u32 s58, s58, s59')
        self.emit('s_add_u32 s58, s58, %s' % lb)
        self.emit('s_add_u32 s58, s58, %d' % CP)
        self.emit('s_add_u32 s59, s58, 16384')
        self.emit('v_lshlrev_b32 v8, 3, v%d' % V_LANE)

        def f(sc):
            self.st(d0, 2, 8, 'WS', 's58', 0, sc)
            self.st(d1, 2, 8, 'WS', 's59', 0, sc)
        self.local_stores(f, clear)

    def pub_po(self, base, d0, d1, clear, lb):
        self.emit('s_lshl_b32 s58, %s, 12' % S_R)
        self.emit('s_lshl_b32 s59, %s, 9' % S_W)
        self.emit('s_add_u32 s58, s58, s59')
        self.emit('s_add_u32 s58, s58, %s' % lb)
        self.emit('s_add_u32 s58, s58, %d' % base)
        self.emit('v_lshlrev_b32 v8, 3, v%d' % V_LANE)

        def f(sc):
            self.st(d0, 2, 8, 'WS', 's58', 0, sc)
            self.st(d1, 2, 8, 'WS', 's58', 2048, sc)
        self.local_stores(f, clear)

    def pub_xp(self, base, data, lb):
        skip = self.label('LS')
        self.emit('s_cmp_lg_u32 %s, 0' % S_W)
        self.emit('s_cbranch_scc1 %s' % skip)
        self.emit('s_lshl_b32 s58, %s, 7' % S_R)
        self.emit('s_add_u32 s58, s58, %s' % lb)
        self.emit('s_add_u32 s58, s58, %d' % base)
        self.emit('s_mov_b64 exec, 0xff')
        self.st(data, 4, V_L16, 'WS', 's58', 0, True)
        self.emit('s_mov_b64 exec, -1')
        self.place(skip)

    def clears(self, lb, early, late):
        if early:
            self.pub_qp(16, True, lb)
            self.pub_qa(16, True, lb)
            skip = self.label('LS')
            self.emit('s_cmp_lg_u32 %s, 0' % S_W)
            self.emit('s_cbranch_scc1 %s' % skip)
            self.pub_ql(16, True, lb)
            self.place(skip)
        if late:
            e = self.emit
            self.pub_st(16, True, lb)
            for i in range(20, 24):
                self.emit('v_mov_b32 v%d, -1' % i)
            self.pub_xs(16, lb)
            self.pub_xp(XP, 16, lb)
            self.pub_xp(XP2, 16, lb)
            e('s_lshl_b32 s59, %s, 10' % S_W)
            e('s_lshl_b32 s58, %s, 12' % S_R)
            e('s_add_u32 s58, s58, s59')
            e('s_add_u32 s58, s58, %s' % lb)
            e('s_add_u32 s62, s58, %d' % PO)
            self.st(16, 4, V_L16, 'WS', 's62', 0, True)
            e('s_add_u32 s62, s58, %d' % PO2)
            self.st(16, 4, V_L16, 'WS', 's62', 0, True)
            e('s_lshl_b32 s58, %s, 1' % S_J)
            e('s_lshr_b32 s62, %s, 1' % S_W)
            e('s_add_u32 s58, s58, s62')
            e('s_lshl_b32 s58, s58, 14')
            e('s_lshl_b32 s62, %s, 11' % S_X)
            e('s_add_u32 s58, s58, s62')
            e('s_and_b32 s62, %s, 1' % S_W)
            e('s_lshl_b32 s62, s62, 10')
            e('s_add_u32 s58, s58, s62')
            e('s_add_u32 s58, s58, %s' % lb)
            e('s_add_u32 s58, s58, %d' % CP)
            self.st(16, 4, V_L16, 'WS', 's58', 0, True)
            skip = self.label('LS')
            e('s_cmp_ge_u32 %s, 2' % S_W)
            e('s_cbranch_scc1 %s' % skip)
            e('s_lshl_b32 s58, %s, 11' % S_R)
            e('s_add_u32 s58, s58, s59')
            e('s_add_u32 s58, s58, %s' % lb)
            e('s_add_u32 s58, s58, %d' % XO)
            self.st(16, 4, V_L16, 'WS', 's58', 0, True)
            self.place(skip)

    def prologue(self):
        e = self.emit
        e('s_cmp_ge_u32 s2, 256')
        e('s_cbranch_scc1 L_END')
        e('s_load_dwordx16 s[64:79], s[0:1], 0')
        e('s_load_dwordx8 s[80:87], s[0:1], 64')
        e('s_load_dwordx2 s[88:89], s[0:1], 96')
        e('v_lshrrev_b32 v1, 6, v0')
        e('v_readfirstlane_b32 %s, v1' % S_W)
        e('v_and_b32 v1, 63, v0')
        e('v_and_b32 v0, 255, v0')
        e('s_lshr_b32 s98, %s, 2' % S_W)
        e('s_and_b32 %s, %s, 3' % (S_W, S_W))
        e('v_lshlrev_b32 v2, 2, v1')
        e('v_lshlrev_b32 v3, 4, v1')
        e('s_and_b32 s58, s2, 7')
        e('s_lshl_b32 s58, s58, 5')
        e('s_lshr_b32 s59, s2, 3')
        e('s_or_b32 %s, s58, s59' % S_R)
        e('s_lshr_b32 %s, %s, 5' % (S_X, S_R))
        e('s_and_b32 %s, %s, 31' % (S_J, S_R))
        e('s_mov_b32 %s, 0' % S_LB)
        e('s_mov_b32 %s, 60000' % S_BUD)
        e('s_mov_b32 %s, 0' % S_MODE)
        e('s_waitcnt lgkmcnt(0)')
        ptrs = dict(X=(64, 2048), CKV=(66, 16777216), WQ=(68, 4194304), WUK=(70, 4194304), WUV=(72, 4194304),
                    WO=(74, 4194304), W1=(78, 1835008), W3=(80, 1835008), W2=(82, 1835008), OUT=(84, 2048),
                    DBG=(86, 256), WS=(88, 268435456))
        for n, (p, sz) in ptrs.items():
            b = SRD[n]
            e('s_mov_b32 s%d, s%d' % (b, p))
            e('s_and_b32 s%d, s%d, 0xffff' % (b + 1, p + 1))
            e('s_mov_b32 s%d, %d' % (b + 2, sz))
            e('s_mov_b32 s%d, 0x20000' % (b + 3))
        for i in range(16, 20):
            e('v_mov_b32 v%d, -1' % i)
        e('s_lshl_b32 s58, %s, 9' % S_W)
        e('v_lshlrev_b32 v8, 3, v1')
        self.ld(6, 2, 8, 'X', 's58')
        e('s_cmp_eq_u32 s98, 1')
        e('s_cbranch_scc1 L_GROUPB')

    def prologueA(self):
        e = self.emit
        self.ts('start')
        self.clears(S_LB, True, False)
        nb = 0
        e('s_and_b32 s58, %s, 3' % S_R)
        e('s_lshl_b32 s58, s58, 2')
        e('s_add_u32 s58, s58, %s' % S_W)
        e('s_lshl_b32 s58, s58, 18')
        e('s_lshr_b32 s59, %s, 2' % S_R)
        e('s_lshl_b32 s59, s59, 7')
        e('s_add_u32 s58, s58, s59')
        e('v_lshrrev_b32 v8, 3, v1')
        e('v_lshlrev_b32 v8, 13, v8')
        e('v_and_b32 v9, 7, v1')
        e('v_lshlrev_b32 v9, 4, v9')
        e('v_add_u32 v8, v8, v9')
        for i in range(4):
            self.ld(A_WQ + 4 * i, 4, 8, 'WQ', 's58', acc=True); nb += 1
            if i < 3:
                e('s_add_u32 s58, s58, 65536')
        e('s_and_b32 s58, %s, 7' % S_R)
        e('s_lshl_b32 s58, s58, 2')
        e('s_add_u32 s58, s58, %s' % S_W)
        e('s_lshl_b32 s58, s58, 17')
        e('s_lshr_b32 s59, %s, 3' % S_R)
        e('s_lshl_b32 s59, s59, 8')
        e('s_add_u32 s58, s58, s59')
        e('v_and_b32 v8, 15, v1')
        e('v_lshlrev_b32 v8, 13, v8')
        e('v_lshrrev_b32 v9, 4, v1')
        e('v_lshlrev_b32 v9, 4, v9')
        e('v_add_u32 v8, v8, v9')
        for k in range(4):
            self.ld(A_WUK + 4 * k, 4, 8, 'WUK', 's58', 64 * k, acc=True); nb += 1
        ljoin = self.label('LJ')
        e('s_waitcnt vmcnt(8)')
        e('s_barrier')
        e('s_cmp_lg_u32 %s, 0' % S_W)
        e('s_cbranch_scc1 %s' % ljoin)
        e('s_getreg_b32 s58, hwreg(HW_REG_XCC_ID)')
        e('s_and_b32 s58, s58, 15')
        e('s_mul_i32 s59, s58, s58')
        e('s_lshl_b32 s59, s59, 16')
        e('s_lshl_b32 s58, s58, 6')
        e('s_add_u32 s58, s58, s59')
        e('s_add_u32 s58, s58, 1')
        e('v_mov_b32 v8, s58')
        e('s_lshl_b32 s59, %s, 5' % S_X)
        e('v_mov_b32 v9, s59')
        e('s_mov_b64 exec, 1')
        e('buffer_atomic_add v8, v9, %s, 0 offen sc1' % srd('DBG'))
        e('s_mov_b64 exec, -1')
        self.ts('flagst')
        self.place(ljoin)
        lsk = self.label('LS')
        e('s_cmp_lg_u32 %s, 0' % S_W)
        e('s_cbranch_scc1 %s' % lsk)
        self.flagwait()
        self.ts('flag')
        self.place(lsk)
        e('s_waitcnt vmcnt(0)')

    def heavy(self):
        e = self.emit
        e('s_lshl_b32 s58, %s, 16' % S_R)
        e('s_lshl_b32 s59, %s, 14' % S_W)
        e('s_add_u32 s58, s58, s59')
        e('s_add_u32 s59, s59, %d' % L_CKV)
        e('s_mul_i32 s62, %s, 5' % S_R)
        e('s_lshl_b32 s63, %s, 2' % S_W)
        e('s_add_u32 s62, s62, s63')
        e('s_lshr_b32 s63, %s, 4' % S_R)
        e('s_add_u32 s62, s62, s63')
        for i in range(16):
            e('s_and_b32 s62, s62, 15')
            e('s_and_b32 s63, s62, 3')
            e('s_lshl_b32 s63, s63, 2')
            e('s_lshr_b32 s64, s62, 2')
            e('s_or_b32 s63, s63, s64')
            e('v_xor_b32 v8, s63, v1')
            e('v_lshlrev_b32 v8, 4, v8')
            e('s_lshl_b32 s64, s62, 10')
            e('s_add_u32 s65, s59, s64')
            e('s_mov_b32 m0, s65')
            e('s_add_u32 s65, s58, s64')
            if 'CKV' not in SKIP:
                e('buffer_load_dwordx4 v8, %s, s65 offen lds' % srd('CKV'))
            e('s_add_u32 s62, s62, 1')

    def bulk2(self):
        e = self.emit
        e('s_lshl_b32 s58, %s, 17' % S_J)
        e('s_lshl_b32 s59, %s, 2' % S_X)
        e('s_add_u32 s59, s59, %s' % S_W)
        e('s_lshl_b32 s59, s59, 8')
        e('s_add_u32 s58, s58, s59')
        for i in range(16):
            self.ld(A_WUV + i, 1, V_L4, 'WUV', 's58', acc=True)
            if i < 15:
                e('s_add_u32 s58, s58, 8192')
        e('s_lshl_b32 s58, %s, 14' % S_R)
        e('s_lshl_b32 s59, %s, 8' % S_W)
        e('s_add_u32 s58, s58, s59')
        for i in range(16):
            self.ld(A_WO + i, 1, V_L4, 'WO', 's58', (i & 3) * 1024, acc=True)
            if (i & 3) == 3 and i < 15:
                e('s_add_u32 s58, s58, 4096')
        skip = self.label('LS')
        e('s_cmp_ge_u32 %s, 28' % S_J)
        e('s_cbranch_scc1 %s' % skip)
        e('s_mul_i32 s62, %s, 28' % S_X)
        e('s_add_u32 s62, s62, %s' % S_J)
        e('s_lshl_b32 s58, s62, 4')
        e('s_mul_i32 s59, %s, %d' % (S_W, 64 * 3584))
        e('s_add_u32 s58, s58, s59')
        e('s_add_u32 s59, s58, %d' % (256 * 3584))
        e('s_movk_i32 s63, 3584')
        e('v_mul_lo_u32 v8, v1, s63')
        self.ld(A_W1, 4, 8, 'W1', 's58', acc=True)
        self.ld(A_W1 + 4, 4, 8, 'W1', 's59', acc=True)
        self.ld(A_W3, 4, 8, 'W3', 's58', acc=True)
        self.ld(A_W3 + 4, 4, 8, 'W3', 's59', acc=True)
        e('s_lshl_b32 s58, s62, 13')
        e('s_lshl_b32 s59, %s, 8' % S_W)
        e('s_add_u32 s58, s58, s59')
        for i in range(8):
            self.ld(A_W2 + i, 1, V_L4, 'W2', 's58', (i & 3) * 1024, acc=True)
            if i == 3:
                e('s_add_u32 s58, s58, 4096')
        self.place(skip)

    def flagwait(self):
        e = self.emit
        l0, l1 = self.label('LP'), self.label('LD')
        e('v_and_b32 v10, 7, v1')
        e('v_lshlrev_b32 v10, 5, v10')
        self.place(l0)
        self.ld(8, 1, 10, 'DBG', '0', 0, True)
        e('s_waitcnt vmcnt(0)')
        e('v_and_b32 v9, 63, v8')
        e('v_cmp_ne_u32 vcc, 32, v9')
        e('s_cbranch_vccz %s' % l1)
        e('s_cmp_eq_u32 %s, 0' % S_BUD)
        e('s_cbranch_scc1 %s' % l1)
        e('s_sub_u32 %s, %s, 1' % (S_BUD, S_BUD))
        e('s_branch %s' % l0)
        self.place(l1)
        e('v_readlane_b32 s58, v8, %s' % S_X)
        e('s_lshr_b32 s59, s58, 16')
        e('s_lshl_b32 s59, s59, 5')
        e('s_lshr_b32 s58, s58, 6')
        e('s_and_b32 s58, s58, 0x3ff')
        e('s_mul_i32 s58, s58, s58')
        e('s_cmp_eq_u32 s58, s59')
        e('s_cselect_b32 %s, 1, 0' % S_MODE)
        e('v_mov_b32 v8, %s' % S_MODE)
        e('v_mov_b32 v9, 0')
        e('ds_write_b32 v9, v8 offset:%d' % L_MD)

    def gather_x(self, base, lb):
        e = self.emit
        e('s_lshl_b32 s58, %s, 10' % S_W)
        e('s_add_u32 s58, s58, %s' % lb)
        e('s_add_u32 s58, s58, %d' % base)
        for x in range(1, 8):
            e('s_add_u32 s%d, s58, %d' % (63 + x, 4096 * x))
        so = ['s58'] + ['s%d' % (63 + x) for x in range(1, 8)]

        def loads():
            for x in range(8):
                self.ld(16 + 4 * x, 4, V_L16, 'WS', so[x], 0, True)
        self.poll(loads, range(16, 48), 8)
        for k in range(4):
            e('v_add_f32 v%d, v%d, v%d' % (16 + k, 16 + k, 20 + k))
            e('v_add_f32 v%d, v%d, v%d' % (24 + k, 24 + k, 28 + k))
            e('v_add_f32 v%d, v%d, v%d' % (32 + k, 32 + k, 36 + k))
            e('v_add_f32 v%d, v%d, v%d' % (40 + k, 40 + k, 44 + k))
        for k in range(4):
            e('v_add_f32 v%d, v%d, v%d' % (16 + k, 16 + k, 24 + k))
            e('v_add_f32 v%d, v%d, v%d' % (32 + k, 32 + k, 40 + k))
        for k in range(4):
            e('v_add_f32 v%d, v%d, v%d' % (16 + k, 16 + k, 32 + k))
        for k in range(4):
            self.bf16r(16 + k, 16 + k)
        for k in range(4):
            e('v_add_f32 v%d, v%d, v%d' % (V_XO + k, V_XO + k, 16 + k))
        for k in range(4):
            self.bf16r(V_XO + k, V_XO + k)

    def layernorm(self, L_XN=L_XN, L_XL=L_XL, hook=None):
        e = self.emit
        e('v_lshlrev_b32 v8, 4, v0')
        e('ds_write_b128 v8, v[4:7] offset:%d' % L_XL)
        e('s_waitcnt lgkmcnt(0)')
        e('s_barrier')
        if hook:
            hook()
        e('v_lshlrev_b32 v8, 5, v1')
        e('ds_read_b128 v[16:19], v8 offset:%d' % L_XL)
        e('ds_read_b128 v[20:23], v8 offset:%d' % (L_XL + 16))
        e('ds_read_b128 v[24:27], v8 offset:%d' % (L_XL + 2048))
        e('ds_read_b128 v[28:31], v8 offset:%d' % (L_XL + 2064))
        e('s_waitcnt lgkmcnt(0)')
        for b in range(2):
            x0 = 16 + 8 * b
            s = 32 + b
            e('v_add_f32 v%d, v%d, v%d' % (s, x0, x0 + 1))
            for k in range(2, 8):
                e('v_add_f32 v%d, v%d, v%d' % (s, s, x0 + k))
        self.dpp_reduce('v_add_f32', [32, 33])
        e('v_readlane_b32 s58, v32, 63')
        e('v_readlane_b32 s59, v33, 63')
        e('v_mov_b32 v34, %s' % f32hex(1.0 / 512))
        e('v_mul_f32 v36, s58, v34')
        e('v_mul_f32 v37, s59, v34')
        for b in range(2):
            x0 = 16 + 8 * b
            s = 32 + b
            for k in range(8):
                e('v_sub_f32 v38, v%d, v%d' % (x0 + k, 36 + b))
                if k == 0:
                    e('v_mul_f32 v%d, v38, v38' % s)
                else:
                    e('v_fmac_f32 v%d, v38, v38' % s)
        self.dpp_reduce('v_add_f32', [32, 33])
        e('v_readlane_b32 s58, v32, 63')
        e('v_readlane_b32 s59, v33, 63')
        e('v_mul_f32 v32, s58, v34')
        e('v_mul_f32 v33, s59, v34')
        for b in range(2):
            self.bf16r(32 + b, 32 + b)
            e('v_add_f32 v%d, %s, v%d' % (32 + b, f32hex(1e-5), 32 + b))
            self.bf16r(32 + b, 32 + b)
            e('v_sqrt_f32 v%d, v%d' % (32 + b, 32 + b))
            self.bf16r(32 + b, 32 + b)
            e('v_rcp_f32 v%d, v%d' % (34 + b, 32 + b))
            self.bf16r(36 + b, 36 + b)
        for b in range(2):
            e('v_fma_f32 v38, -v%d, v%d, 2.0' % (32 + b, 34 + b))
            e('v_mul_f32 v%d, v%d, v38' % (34 + b, 34 + b))
        for b in range(2):
            x0 = 16 + 8 * b
            for k in range(8):
                e('v_sub_f32 v%d, v%d, v%d' % (x0 + k, x0 + k, 36 + b))
            for k in range(8):
                self.bf16r(x0 + k, x0 + k)
            for k in range(8):
                e('v_mul_f32 v%d, v%d, v%d' % (x0 + k, x0 + k, 34 + b))
            for k in range(8):
                self.bf16r(x0 + k, x0 + k)
        e('s_lshl_b32 s58, %s, 12' % S_W)
        e('v_add_u32 v8, s58, v8')
        e('ds_write_b128 v8, v[16:19] offset:%d' % L_XN)
        e('ds_write_b128 v8, v[20:23] offset:%d' % (L_XN + 16))
        e('ds_write_b128 v8, v[24:27] offset:%d' % (L_XN + 2048))
        e('ds_write_b128 v8, v[28:31] offset:%d' % (L_XN + 2064))
        e('s_waitcnt lgkmcnt(0)')

    def p1(self):
        e = self.emit
        e('s_and_b32 s58, %s, 3' % S_R)
        e('s_lshl_b32 s58, s58, 2')
        e('s_add_u32 s58, s58, %s' % S_W)
        e('s_lshl_b32 s58, s58, 7')
        e('s_lshl_b32 s59, %s, 12' % S_W)
        e('s_add_u32 s58, s58, s59')
        e('v_lshrrev_b32 v8, 3, v1')
        e('v_lshlrev_b32 v8, 2, v8')
        e('v_add_u32 v8, s58, v8')
        for i in range(4):
            for b in range(2):
                e('ds_read_b32 v%d, v8 offset:%d' % (16 + 2 * i + b, L_XN + b * 2048 + i * 32))
        for k in range(16):
            e('v_mov_b32 v%d, 0' % (32 + k))
        e('s_waitcnt lgkmcnt(0)')
        for i in range(4):
            for d in range(4):
                e('v_accvgpr_read_b32 v24, a%d' % (A_WQ + 4 * i + d))
                self.unpack(25, 26, 24)
                for b in range(2):
                    e('v_fmac_f32 v%d, v%d, v25' % (32 + 8 * b + 2 * d, 16 + 2 * i + b))
                    e('v_fmac_f32 v%d, v%d, v26' % (32 + 8 * b + 2 * d + 1, 16 + 2 * i + b))
        for k in range(8):
            e('v_permlane32_swap_b32 v%d, v%d' % (32 + k, 40 + k))
            e('v_add_f32 v%d, v%d, v%d' % (32 + k, 32 + k, 40 + k))
        for k in range(4):
            e('v_permlane16_swap_b32 v%d, v%d' % (32 + k, 36 + k))
            e('v_add_f32 v%d, v%d, v%d' % (32 + k, 32 + k, 36 + k))
        for k in range(4):
            e('v_add_f32_dpp v%d, v%d, v%d row_ror:8 row_mask:0xf bank_mask:0xf' % (32 + k, 32 + k, 32 + k))
        e('v_and_b32 v8, 7, v1')
        e('v_lshlrev_b32 v8, 5, v8')
        e('v_lshrrev_b32 v9, 4, v1')
        e('v_and_b32 v9, 1, v9')
        e('v_lshlrev_b32 v9, 4, v9')
        e('v_add_u32 v8, v8, v9')
        e('v_lshrrev_b32 v9, 5, v1')
        e('v_lshlrev_b32 v9, 8, v9')
        e('v_add_u32 v8, v8, v9')
        e('s_lshl_b32 s58, %s, 9' % S_W)
        e('v_add_u32 v8, s58, v8')
        e('ds_write_b128 v8, v[32:35] offset:%d' % L_RQ)
        e('s_waitcnt lgkmcnt(0)')
        e('s_barrier')
        e('s_and_b32 s58, %s, 1' % S_W)
        e('s_lshl_b32 s58, s58, 8')
        e('v_add_u32 v8, s58, v2')
        for w in range(4):
            e('ds_read_b32 v%d, v8 offset:%d' % (16 + w, L_RQ + 512 * w))
        e('s_waitcnt lgkmcnt(0)')
        e('v_add_f32 v16, v16, v17')
        e('v_add_f32 v18, v18, v19')
        e('v_add_f32 v16, v16, v18')
        self.clamp([16])

    def p2(self):
        e = self.emit
        e('s_lshr_b32 s58, %s, 3' % S_R)
        e('s_lshl_b32 s58, s58, 9')
        e('s_add_u32 s58, s58, %s' % S_LB)
        e('s_add_u32 s58, s58, %d' % QP)
        e('s_add_u32 s59, s58, 32768')
        e('s_add_u32 s62, s58, 65536')
        e('s_add_u32 s63, s58, 98304')
        e('v_lshrrev_b32 v9, 5, v1')
        e('v_lshlrev_b32 v9, 14, v9')
        e('v_and_b32 v10, 31, v1')
        e('v_lshlrev_b32 v10, 4, v10')
        e('v_add_u32 v9, v9, v10')
        so = ['s58', 's59', 's62', 's63']

        def loads():
            for ks in range(4):
                self.ld(16 + 4 * ks, 4, 9, 'WS', so[ks], 0, True)
        self.poll(loads, range(16, 32), 8)
        for k in range(4):
            e('v_add_f32 v%d, v%d, v%d' % (16 + k, 16 + k, 20 + k))
            e('v_add_f32 v%d, v%d, v%d' % (24 + k, 24 + k, 28 + k))
        for k in range(4):
            e('v_add_f32 v%d, v%d, v%d' % (16 + k, 16 + k, 24 + k))
        e('v_cvt_pk_bf16_f32 v20, v16, v17')
        e('v_cvt_pk_bf16_f32 v21, v18, v19')
        e('s_lshl_b32 s58, %s, 9' % S_W)
        e('v_lshlrev_b32 v8, 3, v1')
        e('v_add_u32 v8, s58, v8')
        e('ds_write_b64 v8, v[20:21] offset:%d' % L_QS)
        e('v_and_b32 v8, 1, v1')
        e('v_lshlrev_b32 v8, 8, v8')
        e('v_lshrrev_b32 v9, 4, v1')
        e('v_lshlrev_b32 v9, 4, v9')
        e('v_add_u32 v8, v8, v9')
        e('v_add_u32 v8, s58, v8')
        e('s_waitcnt lgkmcnt(0)')
        for k in range(4):
            e('ds_read_b128 v[%d:%d], v8 offset:%d' % (24 + 4 * k, 27 + 4 * k, L_QS + 64 * k))
        for k in range(4):
            e('v_mov_b32 v%d, 0' % (16 + k))
        e('s_waitcnt lgkmcnt(0)')
        for k in range(4):
            e('v_mfma_f32_16x16x32_bf16 v[16:19], a[%d:%d], v[%d:%d], v[16:19]' % (A_WUK + 4 * k, A_WUK + 4 * k + 3, 24 + 4 * k, 27 + 4 * k))
        e('s_mov_b32 s58, %s' % f32hex(SCALE))
        for k in range(4):
            e('v_mul_f32 v%d, s58, v%d' % (16 + k, 16 + k))
        e('v_cvt_pk_bf16_f32 v20, v16, v17')
        e('v_cvt_pk_bf16_f32 v21, v18, v19')
        self.clamp([20, 21])
        self.pub_qa(20, False, S_LB)

    def p2b(self):
        e = self.emit
        skip = self.label('LS')
        e('s_cmp_lg_u32 %s, 0' % S_W)
        e('s_cbranch_scc1 %s' % skip)
        e('s_lshr_b32 s58, %s, 2' % S_X)
        e('s_lshl_b32 s58, s58, 15')
        e('s_lshl_b32 s59, %s, 10' % S_J)
        e('s_add_u32 s58, s58, s59')
        e('s_add_u32 s58, s58, %s' % S_LB)
        e('s_add_u32 s58, s58, %d' % QA)
        self.poll(lambda: self.ld(16, 4, V_L16, 'WS', 's58', 0, True), range(16, 20), 8)
        self.pub_ql(16, False, S_LB)
        self.place(skip)

    def p3(self, first):
        e = self.emit
        AC = 64
        PF = 16
        TMP = 16
        AO = 112
        CF = 80
        ADR = 72
        e('s_lshl_b32 s58, %s, 15' % S_X)
        e('s_lshl_b32 s59, %s, 13' % S_W)
        e('s_add_u32 s58, s58, s59')
        e('s_add_u32 s58, s58, %s' % S_LB)
        e('s_add_u32 s58, s58, %d' % QL)
        e('s_add_u32 s62, s58, 4096')

        def loads():
            for q in range(8):
                self.ld(16 + 4 * q, 4, V_L16, 'WS', 's58' if q < 4 else 's62', (q & 3) * 1024, True)
        self.poll(loads, range(16, 48), 8)
        e('v_add_u32 v8, s59, v3')
        for q in range(8):
            e('ds_write_b128 v8, v[%d:%d] offset:%d' % (16 + 4 * q, 19 + 4 * q, L_SX + 1024 * q))
        e('v_and_b32 v8, 3, v1')
        e('v_lshlrev_b32 v8, 2, v8')
        e('v_lshrrev_b32 v9, 2, v1')
        e('v_and_b32 v9, 3, v9')
        e('v_or_b32 v8, v8, v9')
        e('v_lshrrev_b32 v9, 4, v1')
        e('v_xor_b32 v8, v8, v9')
        e('v_lshlrev_b32 v8, 4, v8')
        e('v_and_b32 v9, 15, v1')
        e('v_lshlrev_b32 v9, 10, v9')
        e('v_or_b32 v8, v8, v9')
        e('s_lshl_b32 s58, %s, 14' % S_W)
        e('s_or_b32 s58, s58, %d' % L_CKV)
        e('v_or_b32 v8, s58, v8')
        for q in range(4):
            e('v_xor_b32 v%d, %d, v8' % (ADR + q, q << 6))
        e('s_waitcnt lgkmcnt(0)')
        e('s_barrier')

        def issue(g):
            base = 16 + 24 * (g & 1)
            for u in range(2):
                kk = 2 * g + u
                e('ds_read_b128 v[%d:%d], v%d offset:%d' % (base + 12 * u, base + 12 * u + 3, ADR + (kk & 3), (kk >> 2) * 256))
                e('ds_read_b128 v[%d:%d], v3 offset:%d' % (base + 12 * u + 4, base + 12 * u + 7, L_SX + kk * 2048))
                e('ds_read_b128 v[%d:%d], v3 offset:%d' % (base + 12 * u + 8, base + 12 * u + 11, L_SX + kk * 2048 + 1024))
        issue(0)
        for g in range(8):
            if g < 7:
                issue(g + 1)
                e('s_waitcnt lgkmcnt(6)')
            else:
                e('s_waitcnt lgkmcnt(0)')
            base = 16 + 24 * (g & 1)
            for u in range(2):
                for ht in range(2):
                    c = '0' if (g == 0 and u == 0) else 'v[%d:%d]' % (AC + 4 * ht, AC + 4 * ht + 3)
                    e('v_mfma_f32_16x16x32_bf16 v[%d:%d], v[%d:%d], v[%d:%d], %s' % (
                        AC + 4 * ht, AC + 4 * ht + 3, base + 12 * u, base + 12 * u + 3,
                        base + 12 * u + 4 + 4 * ht, base + 12 * u + 7 + 4 * ht, c))
        e('v_and_b32 v8, 15, v1')
        e('v_lshlrev_b32 v8, 4, v8')
        e('s_lshl_b32 s58, %s, 2' % S_W)
        e('v_add_u32 v9, s58, v8')
        for ht in range(2):
            e('v_max3_f32 v%d, v%d, v%d, v%d' % (10 + ht, AC + 4 * ht, AC + 4 * ht + 1, AC + 4 * ht + 2))
        for ht in range(2):
            e('v_max_f32 v%d, v%d, v%d' % (10 + ht, 10 + ht, AC + 4 * ht + 3))
        for ht in range(2):
            self.xswap('v_max_f32', 10 + ht, 12 + ht, 16)
        for ht in range(2):
            self.xswap('v_max_f32', 10 + ht, 12 + ht, 32)
        for ht in range(2):
            e('ds_write_b32 v9, v%d offset:%d' % (10 + ht, L_MX + 256 * ht))
        e('s_waitcnt lgkmcnt(0)')
        e('s_barrier')
        for ht in range(2):
            e('ds_read_b128 v[%d:%d], v8 offset:%d' % (16 + 4 * ht, 19 + 4 * ht, L_MX + 256 * ht))
        e('v_and_b32 v14, 15, v1')
        e('v_mul_u32_u24 v14, 144, v14')
        e('v_lshrrev_b32 v15, 4, v1')
        e('v_lshlrev_b32 v15, 3, v15')
        e('v_add_u32 v14, v14, v15')
        e('s_lshl_b32 s58, %s, 5' % S_W)
        e('v_add_u32 v14, s58, v14')
        e('s_waitcnt lgkmcnt(0)')
        for ht in range(2):
            e('v_max3_f32 v%d, v%d, v%d, v%d' % (10 + ht, 16 + 4 * ht, 17 + 4 * ht, 18 + 4 * ht))
        for ht in range(2):
            e('v_max_f32 v%d, v%d, v%d' % (10 + ht, 10 + ht, 19 + 4 * ht))
        for ht in range(2):
            for i in range(4):
                e('v_sub_f32 v%d, v%d, v%d' % (AC + 4 * ht + i, AC + 4 * ht + i, 10 + ht))
        for k in range(8):
            e('v_exp_f32 v%d, v%d' % (AC + k, AC + k))
        for ht in range(2):
            e('v_cvt_pk_bf16_f32 v%d, v%d, v%d' % (16 + 2 * ht, AC + 4 * ht, AC + 4 * ht + 1))
            e('v_cvt_pk_bf16_f32 v%d, v%d, v%d' % (17 + 2 * ht, AC + 4 * ht + 2, AC + 4 * ht + 3))
        for ht in range(2):
            e('ds_write_b64 v14, v[%d:%d] offset:%d' % (16 + 2 * ht, 17 + 2 * ht, L_PL + 16 * 144 * ht))
        for ht in range(2):
            e('v_add_f32 v%d, v%d, v%d' % (10 + ht, AC + 4 * ht, AC + 4 * ht + 1))
            e('v_add_f32 v%d, v%d, v%d' % (12 + ht, AC + 4 * ht + 2, AC + 4 * ht + 3))
        for ht in range(2):
            e('v_add_f32 v%d, v%d, v%d' % (10 + ht, 10 + ht, 12 + ht))
        for ht in range(2):
            self.xswap('v_add_f32', 10 + ht, 12 + ht, 16)
        for ht in range(2):
            self.xswap('v_add_f32', 10 + ht, 12 + ht, 32)
        for ht in range(2):
            e('ds_write_b32 v9, v%d offset:%d' % (10 + ht, L_LW + 256 * ht))
        e('v_and_b32 v9, 15, v1')
        e('v_lshrrev_b32 v9, 2, v9')
        e('v_lshrrev_b32 v11, 5, v1')
        e('v_lshlrev_b32 v8, 3, v11')
        e('v_add_u32 v8, v8, v9')
        e('v_lshlrev_b32 v8, 10, v8')
        e('v_lshlrev_b32 v9, 6, v9')
        e('v_or_b32 v8, v8, v9')
        e('v_lshrrev_b32 v9, 4, v1')
        e('v_xor_b32 v9, v9, v11')
        e('v_and_b32 v9, 1, v9')
        e('v_lshlrev_b32 v9, 5, v9')
        e('v_or_b32 v8, v8, v9')
        e('v_and_b32 v9, 2, v1')
        e('v_lshlrev_b32 v9, 3, v9')
        e('v_or_b32 v8, v8, v9')
        e('v_and_b32 v9, 1, v1')
        e('v_lshlrev_b32 v9, 3, v9')
        e('v_or_b32 v8, v8, v9')
        e('s_lshl_b32 s58, %s, 8' % S_W)
        e('s_or_b32 s58, s58, %d' % L_CKV)
        e('v_or_b32 v8, s58, v8')
        for nt in range(4):
            for j in range(2):
                e('v_xor_b32 v%d, 0x%x, v8' % (ADR + 2 * nt + j, (nt << 6) | (j * 0x1010)))
        e('v_and_b32 v9, 31, v1')
        e('v_mul_u32_u24 v9, 144, v9')
        e('v_lshlrev_b32 v11, 4, v11')
        e('v_add_u32 v9, v9, v11')
        e('s_waitcnt lgkmcnt(0)')
        e('s_barrier')
        for ks in range(4):
            e('ds_read_b128 v[%d:%d], v9 offset:%d' % (PF + 4 * ks, PF + 4 * ks + 3, L_PL + 32 * ks))
        for kstep in range(4):
            for nt in range(4):
                for j in range(2):
                    e('ds_read_b64_tr_b16 v[%d:%d], v%d offset:%d' % (CF + 4 * nt + 2 * j + 16 * (kstep & 1), CF + 4 * nt + 2 * j + 1 + 16 * (kstep & 1), ADR + 2 * nt + j, kstep * 16384))
            for nt in range(4):
                e('s_waitcnt lgkmcnt(%d)' % (6 - 2 * nt))
                c = '0' if kstep == 0 else 'v[%d:%d]' % (AO + 16 * nt, AO + 16 * nt + 15)
                e('v_mfma_f32_32x32x16_bf16 v[%d:%d], v[%d:%d], v[%d:%d], %s' % (
                    AO + 16 * nt, AO + 16 * nt + 15, PF + 4 * kstep, PF + 4 * kstep + 3,
                    CF + 4 * nt + 16 * (kstep & 1), CF + 4 * nt + 3 + 16 * (kstep & 1), c))
        e('v_and_b32 v8, 31, v1')
        e('v_lshlrev_b32 v8, 4, v8')
        e('ds_read_b128 v[48:51], v8 offset:%d' % L_MX)
        e('ds_read_b128 v[52:55], v8 offset:%d' % L_LW)
        for nt in range(4):
            for g in range(4):
                a = AO + 16 * nt + 4 * g
                d = TMP + 8 * nt + 2 * g
                e('v_cvt_pk_bf16_f32 v%d, v%d, v%d' % (d, a, a + 1))
                e('v_cvt_pk_bf16_f32 v%d, v%d, v%d' % (d + 1, a + 2, a + 3))
        self.pub_op(lambda nt, g: TMP + 8 * nt + 2 * g, False, S_LB)
        e('s_waitcnt lgkmcnt(0)')
        e('v_max3_f32 v10, v48, v49, v50')
        e('v_max_f32 v10, v10, v51')
        e('v_add_f32 v12, v52, v53')
        e('v_add_f32 v13, v54, v55')
        e('v_add_f32 v12, v12, v13')
        e('v_cmp_gt_u32 vcc, 32, v1')
        e('v_cndmask_b32 v13, v12, v10, vcc')
        self.clamp([13])
        e('s_waitcnt vmcnt(0)')
        e('s_barrier')
        self.pub_st(13, False, S_LB)

    def p3b(self):
        e = self.emit
        e('s_lshr_b32 s58, %s, 2' % S_X)
        e('s_lshl_b32 s58, s58, 3')
        e('s_lshr_b32 s59, %s, 2' % S_J)
        e('s_add_u32 s58, s58, s59')
        e('s_lshl_b32 s58, s58, 12')
        e('s_and_b32 s62, %s, 3' % S_X)
        e('s_lshl_b32 s62, s62, 10')
        e('s_add_u32 s58, s58, s62')
        e('s_add_u32 s58, s58, %s' % S_LB)
        e('s_add_u32 s58, s58, %d' % ST)
        e('v_and_b32 v9, 31, v1')
        e('v_lshlrev_b32 v9, 5, v9')
        e('s_lshl_b32 s62, %s, 5' % S_X)
        e('s_lshl_b32 s63, %s, 3' % S_W)
        e('s_add_u32 s62, s62, s63')
        e('s_lshl_b32 s62, s62, 15')
        e('s_lshl_b32 s59, s59, 12')
        e('s_add_u32 s62, s62, s59')
        e('s_and_b32 s59, %s, 3' % S_J)
        e('s_lshl_b32 s59, s59, 10')
        e('s_add_u32 s62, s62, s59')
        e('s_add_u32 s62, s62, %s' % S_LB)
        e('s_add_u32 s64, s62, %d' % OP)
        for q in range(1, 8):
            e('s_add_u32 s%d, s64, %d' % (64 + q, 32768 * q))

        def loads():
            self.ld(16, 4, 9, 'WS', 's58', 0, True)
            self.ld(20, 4, 9, 'WS', 's58', 16, True)
        self.poll(loads, range(16, 24), 8)
        for q in range(8):
            self.ld(24 + 4 * q, 4, V_L16, 'WS', 's%d' % (64 + q), 0, True)
        for h in range(4):
            e('v_mov_b32 v%d, v%d' % (56 + h, 16 + h))
        self.dpp_reduce('v_max_f32', [56, 57, 58, 59])
        for h in range(4):
            e('v_readlane_b32 s%d, v%d, 63' % (72 + h, 56 + h))
        for h in range(4):
            e('v_subrev_f32 v%d, s%d, v%d' % (56 + h, 72 + h, 16 + h))
        for h in range(4):
            e('v_exp_f32 v%d, v%d' % (56 + h, 56 + h))
        for h in range(4):
            e('v_mul_f32 v%d, v%d, v%d' % (60 + h, 56 + h, 20 + h))
        self.dpp_reduce('v_add_f32', [60, 61, 62, 63], full=False)
        for h in range(4):
            e('v_readlane_b32 s%d, v%d, 31' % (76 + h, 60 + h))
        for k in range(8):
            e('v_mov_b32 v%d, 0' % (64 + k))
        e('s_lshl_b32 s58, %s, 3' % S_W)
        for q in range(8):
            e('s_waitcnt vmcnt(%d)' % (7 - q))
            for h in range(4):
                e('v_readlane_b32 s%d, v%d, s58' % (80 + h, 56 + h))
            e('s_add_u32 s58, s58, 1')
            for c in range(2):
                for hp in range(2):
                    src = 24 + 4 * q + 2 * c + hp
                    self.unpack(10, 11, src)
                    e('v_fma_f32 v%d, s%d, v10, v%d' % (64 + 4 * c + 2 * hp, 80 + 2 * hp, 64 + 4 * c + 2 * hp))
                    e('v_fma_f32 v%d, s%d, v11, v%d' % (64 + 4 * c + 2 * hp + 1, 80 + 2 * hp + 1, 64 + 4 * c + 2 * hp + 1))
        e('v_lshlrev_b32 v8, 5, v0')
        e('ds_write_b128 v8, v[64:67] offset:%d' % L_AC)
        e('ds_write_b128 v8, v[68:71] offset:%d' % (L_AC + 16))
        e('s_waitcnt lgkmcnt(0)')
        e('s_barrier')
        e('v_lshlrev_b32 v8, 3, v0')
        for w in range(4):
            e('ds_read_b64 v[%d:%d], v8 offset:%d' % (16 + 2 * w, 17 + 2 * w, L_AC + 2048 * w))
        e('s_waitcnt lgkmcnt(0)')
        for k in range(2):
            e('v_add_f32 v%d, v%d, v%d' % (16 + k, 16 + k, 18 + k))
            e('v_add_f32 v%d, v%d, v%d' % (20 + k, 20 + k, 22 + k))
        for k in range(2):
            e('v_add_f32 v%d, v%d, v%d' % (16 + k, 16 + k, 20 + k))
        self.clamp([16, 17])
        self.pub_xo(16, S_LB)
        for k in range(8):
            e('v_mov_b32 v%d, s%d' % (24 + k, 72 + k))
        self.clamp(range(24, 32))
        self.pub_xs(24, S_LB)

    def p4(self):
        e = self.emit
        e('s_lshl_b32 s58, %s, 13' % S_X)
        e('s_lshl_b32 s59, %s, 8' % S_J)
        e('s_add_u32 s58, s58, s59')
        e('s_lshl_b32 s59, %s, 2' % S_W)
        e('s_add_u32 s58, s58, s59')
        e('s_add_u32 s58, s58, %s' % S_LB)
        e('s_add_u32 s58, s58, %d' % XO)
        e('s_add_u32 s59, s58, %d' % (4 * 8 * 8192))
        e('v_lshrrev_b32 v9, 4, v1')
        e('v_lshlrev_b32 v10, 16, v9')
        e('v_and_b32 v11, 15, v1')
        e('v_lshlrev_b32 v11, 4, v11')
        e('v_add_u32 v10, v10, v11')
        e('s_lshl_b32 s62, %s, 5' % S_X)
        e('s_lshl_b32 s63, %s, 2' % S_W)
        e('s_add_u32 s62, s62, s63')
        e('s_add_u32 s62, s62, %s' % S_LB)
        e('s_add_u32 s62, s62, %d' % XS)
        e('v_lshlrev_b32 v9, 8, v9')

        def loads():
            self.ld(16, 1, 10, 'WS', 's58', 0, True)
            self.ld(17, 1, 10, 'WS', 's59', 0, True)
            self.ld(18, 1, 9, 'WS', 's62', 0, True)
            self.ld(19, 1, 9, 'WS', 's62', 1024, True)
            self.ld(20, 1, 9, 'WS', 's62', 16, True)
            self.ld(21, 1, 9, 'WS', 's62', 1040, True)
        self.poll(loads, range(16, 22), 8)
        for b in range(2):
            e('v_mov_b32 v%d, v%d' % (22 + b, 18 + b))
        for b in range(2):
            self.xswap('v_max_f32', 22 + b, 24 + b, 16)
        for b in range(2):
            self.xswap('v_max_f32', 22 + b, 24 + b, 32)
        for b in range(2):
            e('v_sub_f32 v%d, v%d, v%d' % (18 + b, 18 + b, 22 + b))
        for b in range(2):
            e('v_exp_f32 v%d, v%d' % (18 + b, 18 + b))
        for b in range(2):
            e('v_mul_f32 v%d, v%d, v%d' % (16 + b, 16 + b, 18 + b))
            e('v_mul_f32 v%d, v%d, v%d' % (20 + b, 20 + b, 18 + b))
        for r in (16, 17, 20, 21):
            self.xswap('v_add_f32', r, 24, 16)
        for r in (16, 17, 20, 21):
            self.xswap('v_add_f32', r, 24, 32)
        for b in range(2):
            e('v_rcp_f32 v%d, v%d' % (22 + b, 20 + b))
        for b in range(2):
            e('v_mul_f32 v%d, v%d, v%d' % (16 + b, 16 + b, 22 + b))
        for b in range(2):
            for c in range(16):
                e('v_readlane_b32 s%d, v%d, %d' % (64 + 16 * b + c, 16 + b, c))
        for k in range(4):
            e('v_mov_b32 v%d, 0' % (24 + k))
        for c in range(16):
            e('v_accvgpr_read_b32 v28, a%d' % (A_WUV + c))
            self.unpack(29, 30, 28)
            for b in range(2):
                e('v_fma_f32 v%d, s%d, v29, v%d' % (24 + 2 * b, 64 + 16 * b + c, 24 + 2 * b))
                e('v_fma_f32 v%d, s%d, v30, v%d' % (25 + 2 * b, 64 + 16 * b + c, 25 + 2 * b))
        self.clamp(range(24, 28))
        self.pub_cp(24, 26, False, S_LB)

    def p5(self):
        e = self.emit
        e('s_lshl_b32 s58, %s, 6' % S_R)
        e('s_lshl_b32 s59, %s, 4' % S_W)
        e('s_add_u32 s58, s58, s59')
        e('s_add_u32 s58, s58, %s' % S_LB)
        e('s_add_u32 s58, s58, %d' % CP)
        e('v_and_b32 v9, 31, v1')
        e('v_lshlrev_b32 v9, 15, v9')
        e('v_lshrrev_b32 v10, 5, v1')
        e('v_lshlrev_b32 v10, 14, v10')
        e('v_add_u32 v9, v9, v10')
        self.poll(lambda: self.ld(16, 4, 9, 'WS', 's58', 0, True), range(16, 20), 8)
        self.dpp_reduce('v_add_f32', [16, 17, 18, 19], full=False)
        for k in range(4):
            self.bf16r(16 + k, 16 + k)
        e('v_lshrrev_b32 v9, 5, v1')
        e('v_lshlrev_b32 v9, 6, v9')
        e('s_lshl_b32 s58, %s, 4' % S_W)
        e('v_add_u32 v9, s58, v9')
        e('s_mov_b32 s60, 0x80000000')
        e('s_mov_b32 s61, 0x80000000')
        e('s_mov_b64 exec, s[60:61]')
        e('ds_write_b128 v9, v[16:19] offset:%d' % L_CT)
        e('s_mov_b64 exec, -1')
        e('s_waitcnt lgkmcnt(0)')
        e('s_barrier')
        e('v_mov_b32 v9, 0')
        for q in range(8):
            e('ds_read_b128 v[%d:%d], v9 offset:%d' % (32 + 4 * q, 35 + 4 * q, L_CT + 16 * q))
        for k in range(4):
            e('v_mov_b32 v%d, 0' % (24 + k))
        e('s_waitcnt lgkmcnt(0)')
        for d in range(16):
            e('v_accvgpr_read_b32 v28, a%d' % (A_WO + d))
            self.unpack(29, 30, 28)
            for b in range(2):
                e('v_fmac_f32 v%d, v%d, v29' % (24 + 2 * b, 32 + 16 * b + d))
                e('v_fmac_f32 v%d, v%d, v30' % (25 + 2 * b, 32 + 16 * b + d))
        self.clamp(range(24, 28))
        self.pub_po(PO, 24, 26, False, S_LB)

    def p6(self, src, dst, npart, lds):
        e = self.emit
        e('s_lshl_b32 s58, %s, 5' % S_X)
        e('s_lshl_b32 s59, %s, 3' % S_W)
        e('s_add_u32 s58, s58, s59')
        e('s_lshl_b32 s58, s58, 12')
        e('s_lshl_b32 s59, %s, 7' % S_J)
        e('s_add_u32 s58, s58, s59')
        e('s_add_u32 s58, s58, %s' % S_LB)
        e('s_add_u32 s58, s58, %d' % src)
        e('v_lshrrev_b32 v9, 3, v1')
        e('v_lshlrev_b32 v9, 12, v9')
        e('v_and_b32 v10, 7, v1')
        e('v_lshlrev_b32 v10, 4, v10')
        e('v_add_u32 v9, v9, v10')
        if npart < 32:
            for k in range(4):
                e('v_mov_b32 v%d, 0' % (16 + k))
            e('v_lshrrev_b32 v10, 3, v0')
            e('v_cmp_gt_u32 s[60:61], %d, v10' % npart)

        def loads():
            if npart < 32:
                e('s_mov_b64 exec, s[60:61]')
            self.ld(16, 4, 9, 'WS', 's58', 0, True)
            if npart < 32:
                e('s_mov_b64 exec, -1')
        self.poll(loads, range(16, 20), 8)
        for k in range(4):
            e('v_add_f32_dpp v%d, v%d, v%d row_ror:8 row_mask:0xf bank_mask:0xf' % (16 + k, 16 + k, 16 + k))
        for k in range(4):
            self.xswap('v_add_f32', 16 + k, 20 + k, 16)
        for k in range(4):
            self.xswap('v_add_f32', 16 + k, 20 + k, 32)
        e('s_lshl_b32 s58, %s, 7' % S_W)
        e('v_and_b32 v9, 7, v1')
        e('v_lshlrev_b32 v9, 4, v9')
        e('v_add_u32 v10, s58, v9')
        e('ds_write_b128 v10, v[16:19] offset:%d' % lds)
        e('s_waitcnt lgkmcnt(0)')
        e('s_barrier')
        for w in range(4):
            e('ds_read_b128 v[%d:%d], v9 offset:%d' % (16 + 4 * w, 19 + 4 * w, lds + 128 * w))
        e('s_waitcnt lgkmcnt(0)')
        for k in range(4):
            e('v_add_f32 v%d, v%d, v%d' % (16 + k, 16 + k, 20 + k))
            e('v_add_f32 v%d, v%d, v%d' % (24 + k, 24 + k, 28 + k))
        for k in range(4):
            e('v_add_f32 v%d, v%d, v%d' % (16 + k, 16 + k, 24 + k))
        self.clamp(range(16, 20))
        self.pub_xp(dst, 16, S_LB)

    def p7(self):
        e = self.emit
        skip = self.label('LS')
        e('s_cmp_ge_u32 %s, 28' % S_J)
        e('s_cbranch_scc1 %s' % skip)
        e('s_lshl_b32 s58, %s, 12' % S_W)
        e('s_lshl_b32 s59, %s, 8' % S_W)
        e('s_add_u32 s58, s58, s59')
        e('v_add_u32 v8, s58, v2')
        for rr in range(2):
            for b in range(2):
                e('ds_read_b32 v%d, v8 offset:%d' % (16 + 2 * rr + b, L_XN + b * 2048 + rr * 1024))
        for k in range(32):
            e('v_mov_b32 v%d, 0' % (32 + k))
        e('s_waitcnt lgkmcnt(0)')
        for mat, ab in enumerate((A_W1, A_W3)):
            for rr in range(2):
                for d in range(4):
                    e('v_accvgpr_read_b32 v24, a%d' % (ab + 4 * rr + d))
                    self.unpack(25, 26, 24)
                    for b in range(2):
                        a = 32 + 16 * mat + 8 * b + 2 * d
                        e('v_fmac_f32 v%d, v%d, v25' % (a, 16 + 2 * rr + b))
                        e('v_fmac_f32 v%d, v%d, v26' % (a + 1, 16 + 2 * rr + b))
        for k in range(16):
            e('v_permlane32_swap_b32 v%d, v%d' % (32 + k, 48 + k))
            e('v_add_f32 v%d, v%d, v%d' % (32 + k, 32 + k, 48 + k))
        for k in range(8):
            e('v_permlane16_swap_b32 v%d, v%d' % (32 + k, 40 + k))
            e('v_add_f32 v%d, v%d, v%d' % (32 + k, 32 + k, 40 + k))
        self.row_reduce('v_add_f32', list(range(32, 40)))
        e('v_lshrrev_b32 v9, 4, v1')
        e('v_lshlrev_b32 v9, 5, v9')
        e('s_lshl_b32 s58, %s, 7' % S_W)
        e('v_add_u32 v9, s58, v9')
        e('s_mov_b32 s60, 0x80008000')
        e('s_mov_b32 s61, 0x80008000')
        e('s_mov_b64 exec, s[60:61]')
        e('ds_write_b128 v9, v[32:35] offset:%d' % L_FR)
        e('ds_write_b128 v9, v[36:39] offset:%d' % (L_FR + 16))
        e('s_mov_b64 exec, -1')
        e('s_waitcnt lgkmcnt(0)')
        e('s_barrier')
        e('v_and_b32 v9, 15, v1')
        e('v_lshlrev_b32 v9, 2, v9')
        for w in range(4):
            e('ds_read_b32 v%d, v9 offset:%d' % (16 + w, L_FR + 128 * w))
            e('ds_read_b32 v%d, v9 offset:%d' % (20 + w, L_FR + 128 * w + 64))
        e('s_waitcnt lgkmcnt(0)')
        e('v_add_f32 v16, v16, v17')
        e('v_add_f32 v18, v18, v19')
        e('v_add_f32 v20, v20, v21')
        e('v_add_f32 v22, v22, v23')
        e('v_add_f32 v16, v16, v18')
        e('v_add_f32 v20, v20, v22')
        self.bf16r(16, 16)
        self.bf16r(20, 20)
        e('v_mul_f32 v17, %s, v16' % f32hex(-1.4426950408889634))
        e('v_exp_f32 v17, v17')
        e('v_add_f32 v17, 1.0, v17')
        e('v_rcp_f32 v17, v17')
        e('v_mul_f32 v17, v17, v16')
        self.bf16r(17, 17)
        e('v_mul_f32 v17, v17, v20')
        self.bf16r(17, 17)
        for k in range(16):
            e('v_readlane_b32 s%d, v17, %d' % (64 + k, k))
        for k in range(4):
            e('v_mov_b32 v%d, 0' % (24 + k))
        for f in range(8):
            e('v_accvgpr_read_b32 v28, a%d' % (A_W2 + f))
            self.unpack(29, 30, 28)
            for b in range(2):
                e('v_fma_f32 v%d, s%d, v29, v%d' % (24 + 2 * b, 64 + 8 * b + f, 24 + 2 * b))
                e('v_fma_f32 v%d, s%d, v30, v%d' % (25 + 2 * b, 64 + 8 * b + f, 25 + 2 * b))
        self.clamp(range(24, 28))
        self.pub_po(PO2, 24, 26, False, S_LB)
        done = self.label('LS')
        e('s_branch %s' % done)
        self.place(skip)
        e('s_barrier')
        self.nbar -= 1
        self.place(done)

    def final(self):
        e = self.emit
        e('s_cmp_lg_u32 %s, 0' % S_R)
        e('s_cbranch_scc1 L_END')
        self.gather_x(XP2, S_LB)
        e('v_cvt_pk_bf16_f32 v16, v4, v5')
        e('v_cvt_pk_bf16_f32 v17, v6, v7')
        e('v_lshlrev_b32 v8, 3, v0')
        self.st(16, 2, 8, 'OUT')

    def unpack_x0(self):
        self.unpack(4, 5, 6)
        self.unpack(6, 7, 7)

    def hook0(self):
        for i in range(16, 20):
            self.emit('v_mov_b32 v%d, -1' % i)
        self.heavy()
        self.clears(S_LB, False, True)

    def a_phases(self, L):
        self.layernorm(hook=self.hook0 if L == 0 else None)
        if L == 0:
            self.emit('v_mov_b32 v9, 0')
            self.emit('ds_read_b32 v8, v9 offset:%d' % L_MD)
            self.emit('s_waitcnt lgkmcnt(0)')
            self.emit('v_readfirstlane_b32 %s, v8' % S_MODE)
        self.p1()
        self.pub_qp(16, False, S_LB)
        self.phase_end()
        self.p2()
        self.phase_end()
        self.p2b()
        self.p3(L == 0)
        self.phase_end()
        self.p3b()
        self.emit('s_barrier')
        self.phase_end()

    def b_phases(self, L):
        self.p4()
        self.phase_end()
        self.p5()
        self.phase_end()
        self.p6(PO, XP, 32, L_R6)
        self.phase_end()
        if L == 0:
            self.unpack_x0()
        self.gather_x(XP, S_LB)
        self.layernorm(L_XN2, L_XL2)
        self.p7()
        self.phase_end()
        self.p6(PO2, XP2, 28, L_R8)
        self.emit('s_barrier')
        self.phase_end()

    def count_bar(self, fn):
        g = G(None, False)
        fn(g)
        return g.nbar

    def build(self):
        e = self.emit
        nA = self.count_bar(lambda g: g.a_phases(1))
        nB = self.count_bar(lambda g: g.b_phases(1))
        self.prologue()
        self.prologueA()
        self.unpack_x0()
        for L in range(2):
            self.a_phases(L)
            if L == 0:
                for i in range(16, 20):
                    e('v_mov_b32 v%d, -1' % i)
                e('s_mov_b32 s99, 0x%x' % LAYER)
                self.clears('s99', True, True)
                e('s_waitcnt vmcnt(0)')
                self.idle_barriers(3)
                self.gather_x(XP, S_LB)
                self.idle_barriers(nB - 3)
                self.gather_x(XP2, S_LB)
                e('s_mov_b32 %s, 0x%x' % (S_LB, LAYER))
        e('s_branch L_END')
        self.place('L_GROUPB')
        self.hist = []
        e('s_barrier')
        prof, self.prof = self.prof, False
        for L in range(2):
            self.idle_barriers(2)
            if L == 0:
                self.bulk2()
            if L == 1:
                self.gather_x(XP2, S_LB)
                e('s_mov_b32 %s, 0x%x' % (S_LB, LAYER))
            self.idle_barriers(nA - 2)
            if L == 0:
                e('v_mov_b32 v9, 0')
                e('ds_read_b32 v8, v9 offset:%d' % L_MD)
                e('s_waitcnt lgkmcnt(0)')
                e('v_readfirstlane_b32 %s, v8' % S_MODE)
            self.prof = prof
            self.b_phases(L)
            self.prof = False
        self.prof = prof
        self.final()
        self.place('L_END')
        e('s_endpgm')


def main():
    stop = None
    outp = 'interleave_layers__compressed_kv_cla__glu_gated_swiglu__decode.s'
    for a in sys.argv[1:]:
        if a.startswith('stop='):
            stop = int(a[5:])
        if a.startswith('out='):
            outp = a[4:]
    prof = any(a == 'prof' for a in sys.argv[1:])
    g = G(stop, prof)
    g.build()
    if prof:
        open(outp + '.ts', 'w').write('\n'.join(g.tsnames))
    ref = open('interleave_layers__compressed_kv_cla__glu_gated_swiglu__decode.s.ref').read()
    head = []
    for l in ref.split('\n'):
        if l.startswith('; @launch'):
            break
        head.append(l)
    s = '\n'.join(head) + '\n'
    s += '; @launch grid=(256,1,1) block=(512,1,1) lds=%d\n' % LDS_BYTES
    s += '.amdgcn_target "amdgcn-amd-amdhsa--gfx950"\n.text\n.globl %s\n.p2align 8\n.type %s,@function\n%s:\n' % (KNAME, KNAME, KNAME)
    s += g.text()
    s += '''.section .rodata,"a"
.p2align 6
.amdhsa_kernel %s
  .amdhsa_next_free_vgpr 256
  .amdhsa_next_free_sgpr 102
  .amdhsa_accum_offset 192
  .amdhsa_group_segment_fixed_size 0
  .amdhsa_kernarg_size 104
  .amdhsa_user_sgpr_count 2
  .amdhsa_user_sgpr_kernarg_segment_ptr 1
  .amdhsa_system_sgpr_workgroup_id_x 1
.end_amdhsa_kernel
''' % KNAME
    open(outp, 'w').write(s)


if __name__ == '__main__':
    main()
```

```python
import sys, os
sys.path.insert(0, os.path.dirname(os.path.abspath(__file__)))
from asmlib import Asm

KNAME = 'interleave_layers__compressed_kv_cla__glu_gated_swiglu__decode_kernel'

QP = 0xD00000
QA = 0x020000
ST = 0x030000
XS = 0x040000
XO = 0x050000
XP = 0x0D0000
XP2 = 0x0E0000
CP = 0x100000
PO = 0x200000
PO2 = 0x300000
OP = 0x400000
QL = 0xC00000
LAYER = 0x1000000

L_CKV = 65536
L_XN = 0
L_AC = 0
L_XL = 16384
L_SX = 20480
L_RQ = 53248
L_QS = 55296
L_CT = 57344
L_R6 = 57600
L_FR = 58112
L_R8 = 58624
L_XN2 = L_XN
L_XL2 = L_XL
L_MD = 59136
L_MX = 59392
L_LW = 59904
L_PL = 60416
LDS_BYTES = 131072

S_WG, S_R, S_W, S_LB, S_BUD, S_MODE = 's2', 's3', 's4', 's5', 's6', 's7'
SRD = dict(X=8, CKV=12, WQ=16, WUK=20, WUV=24, WO=28, W1=32, W3=36, W2=40, OUT=44, DBG=48, WS=52)
S_X, S_J = 's56', 's57'


def srd(n):
    b = SRD[n]
    return 's[%d:%d]' % (b, b + 3)


def vr(a, n=1):
    return 'v%d' % a if n == 1 else 'v[%d:%d]' % (a, a + n - 1)


def ar(a, n=1):
    return 'a%d' % a if n == 1 else 'a[%d:%d]' % (a, a + n - 1)


A_WQ = 0
A_WUK = 56
A_WUV, A_WO, A_W1, A_W3, A_W2 = 0, 16, 32, 40, 48
V_LANE, V_L4, V_L16 = 1, 2, 3
V_XO = 4

SCALE = 0.08838834764831845 * 1.4426950408889634
import struct


def f32hex(x):
    return '0x%08x' % struct.unpack('<I', struct.pack('<f', x))[0]


PACE = int(os.environ.get('PACE', '5'))
SKIP = set(os.environ.get('SKIP', '').split(','))
WNAME = {1: 'dword', 2: 'dwordx2', 4: 'dwordx4'}


class G(Asm):
    def __init__(self, stop=None, prof=False):
        super().__init__()
        self.stop = stop
        self.phase_no = 0
        self.prof = prof
        self.tsnames = []
        self.nbar = 0

    def emit(self, text):
        if text.strip() == 's_barrier':
            self.nbar += 1
        super().emit(text)

    __call__ = emit

    def idle_barriers(self, n):
        for _ in range(n):
            self.emit('s_barrier')

    def ld(self, dst, n, vaddr, buf, soff='0', imm=0, sc1=False, acc=False):
        if buf in SKIP:
            return
        d = ar(dst, n) if acc else vr(dst, n)
        t = 'buffer_load_%s %s, %s, %s, %s offen' % (WNAME[n], d, vr(vaddr), srd(buf), soff)
        if imm:
            assert 0 <= imm < 4096
            t += ' offset:%d' % imm
        if sc1:
            t += ' sc1'
        self.emit(t)

    def st(self, src, n, vaddr, buf, soff='0', imm=0, sc1=False):
        t = 'buffer_store_%s %s, %s, %s, %s offen' % (WNAME[n], vr(src, n), vr(vaddr), srd(buf), soff)
        if imm:
            assert 0 <= imm < 4096
            t += ' offset:%d' % imm
        if sc1:
            t += ' sc1'
        self.emit(t)

    def clamp(self, regs):
        for r in regs:
            self.emit('v_min_u32 v%d, -2, v%d' % (r, r))

    def local_stores(self, fn, clear=False):
        if clear:
            fn(True)
            return
        lf, le = self.label('LF'), self.label('LE')
        self.emit('s_cmp_eq_u32 %s, 1' % S_MODE)
        self.emit('s_cbranch_scc1 %s' % lf)
        fn(True)
        self.emit('s_branch %s' % le)
        self.place(lf)
        fn(False)
        self.place(le)

    def poll(self, loads, regs, tmp):
        l0, l1 = self.label('LP'), self.label('LD')
        self.place(l0)
        loads()
        self.emit('s_waitcnt vmcnt(0)')
        regs = list(regs)
        if len(regs) == 1:
            self.emit('v_mov_b32 v%d, v%d' % (tmp, regs[0]))
        elif len(regs) == 2:
            self.emit('v_max_u32 v%d, v%d, v%d' % (tmp, regs[0], regs[1]))
        else:
            self.emit('v_max3_u32 v%d, v%d, v%d, v%d' % (tmp, regs[0], regs[1], regs[2]))
            i = 3
            while i < len(regs):
                if i + 1 < len(regs):
                    self.emit('v_max3_u32 v%d, v%d, v%d, v%d' % (tmp, tmp, regs[i], regs[i + 1]))
                    i += 2
                else:
                    self.emit('v_max_u32 v%d, v%d, v%d' % (tmp, tmp, regs[i]))
                    i += 1
        self.emit('v_cmp_eq_u32 vcc, -1, v%d' % tmp)
        self.emit('s_cbranch_vccz %s' % l1)
        self.emit('s_cmp_eq_u32 %s, 0' % S_BUD)
        self.emit('s_cbranch_scc1 %s' % l1)
        self.emit('s_sub_u32 %s, %s, 1' % (S_BUD, S_BUD))
        self.emit('s_branch %s' % l0)
        self.place(l1)
        self.ts('poll')

    def dpp_reduce(self, op, regs, full=True):
        steps = ['row_shr:1', 'row_shr:2', 'row_shr:4', 'row_shr:8']
        for s in steps:
            for r in regs:
                self.emit('%s_dpp v%d, v%d, v%d %s row_mask:0xf bank_mask:0xf' % (op, r, r, r, s))
        for r in regs:
            self.emit('%s_dpp v%d, v%d, v%d row_bcast:15 row_mask:0xa bank_mask:0xf' % (op, r, r, r))
        if full:
            for r in regs:
                self.emit('%s_dpp v%d, v%d, v%d row_bcast:31 row_mask:0xc bank_mask:0xf' % (op, r, r, r))

    def row_reduce(self, op, regs):
        for s in ['row_shr:1', 'row_shr:2', 'row_shr:4', 'row_shr:8']:
            for r in regs:
                self.emit('%s_dpp v%d, v%d, v%d %s row_mask:0xf bank_mask:0xf' % (op, r, r, r, s))

    def bf16r(self, dst, src, tmp=None):
        self.emit('v_cvt_pk_bf16_f32 v%d, v%d, v%d' % (dst, src, src))
        self.emit('v_lshlrev_b32 v%d, 16, v%d' % (dst, dst))

    def unpack(self, lo, hi, src):
        self.emit('v_lshlrev_b32 v%d, 16, v%d' % (lo, src))
        self.emit('v_and_b32 v%d, 0xffff0000, v%d' % (hi, src))

    def xswap(self, op, r, t, which):
        self.emit('v_mov_b32 v%d, v%d' % (t, r))
        self.emit('v_permlane%d_swap_b32 v%d, v%d' % (which, r, t))
        self.emit('%s v%d, v%d, v%d' % (op, r, r, t))

    def ts(self, name):
        if not self.prof:
            return
        idx = len(self.tsnames)
        self.tsnames.append(name)
        skip = self.label('LT')
        self.emit('s_cmp_lg_u32 %s, 0' % S_W)
        self.emit('s_cbranch_scc1 %s' % skip)
        self.emit('s_memrealtime s[100:101]')
        self.emit('s_waitcnt lgkmcnt(0)')
        self.emit('v_mov_b32 v14, s100')
        self.emit('s_lshl_b32 s100, %s, 8' % S_R)
        self.emit('s_add_u32 s100, s100, 0x3000000')
        self.emit('v_mov_b32 v15, 0')
        self.emit('s_mov_b64 exec, 1')
        self.emit('buffer_store_dword v14, v15, %s, s100 offen offset:%d' % (srd('WS'), idx * 4))
        self.emit('s_mov_b64 exec, -1')
        self.place(skip)

    def phase_end(self):
        self.phase_no += 1
        self.ts('end%d' % self.phase_no)
        if self.stop is not None and self.phase_no == self.stop:
            self.emit('s_branch L_END')

    def pub_qp(self, data, clear, lb):
        e = self.emit
        e('s_and_b32 s58, %s, 3' % S_R)
        e('s_lshl_b32 s58, s58, 2')
        e('s_add_u32 s58, s58, %s' % S_W)
        e('s_lshl_b32 s58, s58, 15')
        e('s_lshr_b32 s59, %s, 2' % S_R)
        e('s_lshl_b32 s59, s59, 8')
        e('s_add_u32 s58, s58, s59')
        e('s_add_u32 s58, s58, %s' % lb)
        e('s_add_u32 s58, s58, %d' % QP)
        e('v_and_b32 v8, 7, v1')
        e('v_lshlrev_b32 v8, 5, v8')
        e('v_lshrrev_b32 v9, 4, v1')
        e('v_and_b32 v9, 1, v9')
        e('v_lshlrev_b32 v9, 4, v9')
        e('v_add_u32 v8, v8, v9')
        e('v_lshrrev_b32 v9, 5, v1')
        e('v_lshlrev_b32 v9, 14, v9')
        e('v_add_u32 v8, v8, v9')
        e('s_mov_b32 s60, 0x00ff00ff')
        e('s_mov_b32 s61, 0x00ff00ff')
        e('s_mov_b64 exec, s[60:61]')
        self.local_stores(lambda sc: self.st(data, 4, 8, 'WS', 's58', 0, sc), clear)
        e('s_mov_b64 exec, -1')

    def pub_qa(self, data, clear, lb):
        self.emit('s_and_b32 s58, %s, 7' % S_R)
        self.emit('s_lshl_b32 s58, s58, 1')
        self.emit('s_lshr_b32 s59, %s, 1' % S_W)
        self.emit('s_add_u32 s58, s58, s59')
        self.emit('s_lshl_b32 s58, s58, 11')
        self.emit('s_lshr_b32 s59, %s, 7' % S_R)
        self.emit('s_lshl_b32 s59, s59, 10')
        self.emit('s_add_u32 s58, s58, s59')
        self.emit('s_and_b32 s59, %s, 1' % S_W)
        self.emit('s_lshl_b32 s59, s59, 9')
        self.emit('s_add_u32 s58, s58, s59')
        self.emit('s_lshr_b32 s59, %s, 3' % S_R)
        self.emit('s_and_b32 s59, s59, 15')
        self.emit('s_lshl_b32 s59, s59, 4')
        self.emit('s_add_u32 s58, s58, s59')
        self.emit('s_add_u32 s58, s58, %s' % lb)
        self.emit('s_add_u32 s58, s58, %d' % QA)
        self.emit('v_and_b32 v8, 1, v%d' % V_LANE)
        self.emit('v_lshlrev_b32 v8, 15, v8')
        self.emit('v_lshrrev_b32 v9, 5, v%d' % V_LANE)
        self.emit('v_lshlrev_b32 v9, 8, v9')
        self.emit('v_add_u32 v8, v8, v9')
        self.emit('v_lshrrev_b32 v9, 4, v%d' % V_LANE)
        self.emit('v_and_b32 v9, 1, v9')
        self.emit('v_lshlrev_b32 v9, 3, v9')
        self.emit('v_add_u32 v8, v8, v9')
        self.emit('s_mov_b32 s60, 0x00030003')
        self.emit('s_mov_b32 s61, 0x00030003')
        self.emit('s_mov_b64 exec, s[60:61]')
        self.st(data, 2, 8, 'WS', 's58', 0, True)
        self.emit('s_mov_b64 exec, -1')

    def pub_ql(self, data, clear, lb):
        self.emit('s_lshl_b32 s58, %s, 10' % S_R)
        self.emit('s_add_u32 s58, s58, %s' % lb)
        self.emit('s_add_u32 s58, s58, %d' % QL)
        self.local_stores(lambda sc: self.st(data, 4, V_L16, 'WS', 's58', 0, sc), clear)

    def pub_op(self, datafn, clear, lb):
        self.emit('s_lshl_b32 s58, %s, 15' % S_R)
        self.emit('s_lshl_b32 s59, %s, 10' % S_W)
        self.emit('s_add_u32 s58, s58, s59')
        self.emit('s_add_u32 s58, s58, %s' % lb)
        self.emit('s_add_u32 s58, s58, %d' % OP)
        self.emit('s_add_u32 s59, s58, 8192')
        self.emit('s_add_u32 s62, s58, 16384')
        self.emit('s_add_u32 s63, s58, 24576')
        self.emit('v_lshrrev_b32 v8, 5, v%d' % V_LANE)
        self.emit('v_lshlrev_b32 v8, 12, v8')
        self.emit('v_and_b32 v9, 31, v%d' % V_LANE)
        self.emit('v_lshlrev_b32 v9, 3, v9')
        self.emit('v_add_u32 v8, v8, v9')
        so = ['s58', 's59', 's62', 's63']

        def f(sc):
            for nt in range(4):
                for g in range(4):
                    self.st(datafn(nt, g), 2, 8, 'WS', so[g], nt * 256, sc)
        self.local_stores(f, clear)

    def pub_st(self, data, clear, lb):
        skip = self.label('LS')
        self.emit('s_cmp_lg_u32 %s, 0' % S_W)
        self.emit('s_cbranch_scc1 %s' % skip)
        self.emit('s_lshr_b32 s58, %s, 7' % S_R)
        self.emit('s_lshl_b32 s58, s58, 15')
        self.emit('s_and_b32 s59, %s, 127' % S_R)
        self.emit('s_lshl_b32 s59, s59, 5')
        self.emit('s_add_u32 s58, s58, s59')
        self.emit('s_add_u32 s58, s58, %s' % lb)
        self.emit('s_add_u32 s58, s58, %d' % ST)
        self.emit('v_and_b32 v8, 31, v%d' % V_LANE)
        self.emit('v_lshrrev_b32 v9, 2, v8')
        self.emit('v_lshlrev_b32 v9, 12, v9')
        self.emit('v_and_b32 v8, 3, v8')
        self.emit('v_lshlrev_b32 v8, 2, v8')
        self.emit('v_add_u32 v8, v8, v9')
        self.emit('v_lshrrev_b32 v9, 5, v%d' % V_LANE)
        self.emit('v_lshlrev_b32 v9, 4, v9')
        self.emit('v_add_u32 v8, v8, v9')
        self.local_stores(lambda sc: self.st(data, 1, 8, 'WS', 's58', 0, sc), clear)
        self.place(skip)

    def pub_xo(self, data, lb):
        self.emit('s_lshl_b32 s58, %s, 11' % S_R)
        self.emit('s_add_u32 s58, s58, %s' % lb)
        self.emit('s_add_u32 s58, s58, %d' % XO)
        self.emit('v_lshlrev_b32 v8, 3, v0')
        self.st(data, 2, 8, 'WS', 's58', 0, True)

    def pub_xs(self, data, lb):
        skip = self.label('LS')
        self.emit('s_and_b32 s58, %s, 3' % S_J)
        self.emit('s_or_b32 s58, s58, %s' % S_W)
        self.emit('s_cmp_lg_u32 s58, 0')
        self.emit('s_cbranch_scc1 %s' % skip)
        self.emit('s_lshr_b32 s58, %s, 2' % S_R)
        self.emit('s_lshl_b32 s58, s58, 5')
        self.emit('s_add_u32 s58, s58, %s' % lb)
        self.emit('s_add_u32 s58, s58, %d' % XS)
        self.emit('v_mov_b32 v8, 0')
        self.emit('s_mov_b64 exec, 1')
        self.st(data, 4, 8, 'WS', 's58', 0, True)
        self.st(data + 4, 4, 8, 'WS', 's58', 16, True)
        self.emit('s_mov_b64 exec, -1')
        self.place(skip)

    def pub_cp(self, d0, d1, clear, lb):
        self.emit('s_lshl_b32 s58, %s, 15' % S_J)
        self.emit('s_lshl_b32 s59, %s, 2' % S_X)
        self.emit('s_add_u32 s59, s59, %s' % S_W)
        self.emit('s_lshl_b32 s59, s59, 9')
        self.emit('s_add_u32 s58, s58, s59')
        self.emit('s_add_u32 s58, s58, %s' % lb)
        self.emit('s_add_u32 s58, s58, %d' % CP)
        self.emit('s_add_u32 s59, s58, 16384')
        self.emit('v_lshlrev_b32 v8, 3, v%d' % V_LANE)

        def f(sc):
            self.st(d0, 2, 8, 'WS', 's58', 0, sc)
            self.st(d1, 2, 8, 'WS', 's59', 0, sc)
        self.local_stores(f, clear)

    def pub_po(self, base, d0, d1, clear, lb):
        self.emit('s_lshl_b32 s58, %s, 12' % S_R)
        self.emit('s_lshl_b32 s59, %s, 9' % S_W)
        self.emit('s_add_u32 s58, s58, s59')
        self.emit('s_add_u32 s58, s58, %s' % lb)
        self.emit('s_add_u32 s58, s58, %d' % base)
        self.emit('v_lshlrev_b32 v8, 3, v%d' % V_LANE)

        def f(sc):
            self.st(d0, 2, 8, 'WS', 's58', 0, sc)
            self.st(d1, 2, 8, 'WS', 's58', 2048, sc)
        self.local_stores(f, clear)

    def pub_xp(self, base, data, lb):
        skip = self.label('LS')
        self.emit('s_cmp_lg_u32 %s, 0' % S_W)
        self.emit('s_cbranch_scc1 %s' % skip)
        self.emit('s_lshl_b32 s58, %s, 7' % S_R)
        self.emit('s_add_u32 s58, s58, %s' % lb)
        self.emit('s_add_u32 s58, s58, %d' % base)
        self.emit('s_mov_b64 exec, 0xff')
        self.st(data, 4, V_L16, 'WS', 's58', 0, True)
        self.emit('s_mov_b64 exec, -1')
        self.place(skip)

    def clears(self, lb, early, late):
        if early:
            self.pub_qp(16, True, lb)
            self.pub_qa(16, True, lb)
            skip = self.label('LS')
            self.emit('s_cmp_lg_u32 %s, 0' % S_W)
            self.emit('s_cbranch_scc1 %s' % skip)
            self.pub_ql(16, True, lb)
            self.place(skip)
        if late:
            e = self.emit
            self.pub_st(16, True, lb)
            for i in range(20, 24):
                self.emit('v_mov_b32 v%d, -1' % i)
            self.pub_xs(16, lb)
            self.pub_xp(XP, 16, lb)
            self.pub_xp(XP2, 16, lb)
            e('s_lshl_b32 s59, %s, 10' % S_W)
            e('s_lshl_b32 s58, %s, 12' % S_R)
            e('s_add_u32 s58, s58, s59')
            e('s_add_u32 s58, s58, %s' % lb)
            e('s_add_u32 s62, s58, %d' % PO)
            self.st(16, 4, V_L16, 'WS', 's62', 0, True)
            e('s_add_u32 s62, s58, %d' % PO2)
            self.st(16, 4, V_L16, 'WS', 's62', 0, True)
            e('s_lshl_b32 s58, %s, 1' % S_J)
            e('s_lshr_b32 s62, %s, 1' % S_W)
            e('s_add_u32 s58, s58, s62')
            e('s_lshl_b32 s58, s58, 14')
            e('s_lshl_b32 s62, %s, 11' % S_X)
            e('s_add_u32 s58, s58, s62')
            e('s_and_b32 s62, %s, 1' % S_W)
            e('s_lshl_b32 s62, s62, 10')
            e('s_add_u32 s58, s58, s62')
            e('s_add_u32 s58, s58, %s' % lb)
            e('s_add_u32 s58, s58, %d' % CP)
            self.st(16, 4, V_L16, 'WS', 's58', 0, True)
            skip = self.label('LS')
            e('s_cmp_ge_u32 %s, 2' % S_W)
            e('s_cbranch_scc1 %s' % skip)
            e('s_lshl_b32 s58, %s, 11' % S_R)
            e('s_add_u32 s58, s58, s59')
            e('s_add_u32 s58, s58, %s' % lb)
            e('s_add_u32 s58, s58, %d' % XO)
            self.st(16, 4, V_L16, 'WS', 's58', 0, True)
            self.place(skip)

    def prologue(self):
        e = self.emit
        e('s_cmp_ge_u32 s2, 256')
        e('s_cbranch_scc1 L_END')
        e('s_load_dwordx16 s[64:79], s[0:1], 0')
        e('s_load_dwordx8 s[80:87], s[0:1], 64')
        e('s_load_dwordx2 s[88:89], s[0:1], 96')
        e('v_lshrrev_b32 v1, 6, v0')
        e('v_readfirstlane_b32 %s, v1' % S_W)
        e('v_and_b32 v1, 63, v0')
        e('v_and_b32 v0, 255, v0')
        e('s_lshr_b32 s98, %s, 2' % S_W)
        e('s_and_b32 %s, %s, 3' % (S_W, S_W))
        e('v_lshlrev_b32 v2, 2, v1')
        e('v_lshlrev_b32 v3, 4, v1')
        e('s_and_b32 s58, s2, 7')
        e('s_lshl_b32 s58, s58, 5')
        e('s_lshr_b32 s59, s2, 3')
        e('s_or_b32 %s, s58, s59' % S_R)
        e('s_lshr_b32 %s, %s, 5' % (S_X, S_R))
        e('s_and_b32 %s, %s, 31' % (S_J, S_R))
        e('s_mov_b32 %s, 0' % S_LB)
        e('s_mov_b32 %s, 60000' % S_BUD)
        e('s_mov_b32 %s, 0' % S_MODE)
        e('s_waitcnt lgkmcnt(0)')
        ptrs = dict(X=(64, 2048), CKV=(66, 16777216), WQ=(68, 4194304), WUK=(70, 4194304), WUV=(72, 4194304),
                    WO=(74, 4194304), W1=(78, 1835008), W3=(80, 1835008), W2=(82, 1835008), OUT=(84, 2048),
                    DBG=(86, 256), WS=(88, 268435456))
        for n, (p, sz) in ptrs.items():
            b = SRD[n]
            e('s_mov_b32 s%d, s%d' % (b, p))
            e('s_and_b32 s%d, s%d, 0xffff' % (b + 1, p + 1))
            e('s_mov_b32 s%d, %d' % (b + 2, sz))
            e('s_mov_b32 s%d, 0x20000' % (b + 3))
        for i in range(16, 20):
            e('v_mov_b32 v%d, -1' % i)
        e('s_lshl_b32 s58, %s, 9' % S_W)
        e('v_lshlrev_b32 v8, 3, v1')
        self.ld(6, 2, 8, 'X', 's58')
        e('s_cmp_eq_u32 s98, 1')
        e('s_cbranch_scc1 L_GROUPB')

    def prologueA(self):
        e = self.emit
        nb = 0
        self.ts('start')
        e('s_and_b32 s58, %s, 3' % S_R)
        e('s_lshl_b32 s58, s58, 2')
        e('s_add_u32 s58, s58, %s' % S_W)
        e('s_lshl_b32 s58, s58, 18')
        e('s_lshr_b32 s59, %s, 2' % S_R)
        e('s_lshl_b32 s59, s59, 7')
        e('s_add_u32 s58, s58, s59')
        e('v_lshrrev_b32 v8, 3, v1')
        e('v_lshlrev_b32 v8, 13, v8')
        e('v_and_b32 v9, 7, v1')
        e('v_lshlrev_b32 v9, 4, v9')
        e('v_add_u32 v8, v8, v9')
        for i in range(4):
            self.ld(A_WQ + 4 * i, 4, 8, 'WQ', 's58', acc=True); nb += 1
            if i < 3:
                e('s_add_u32 s58, s58, 65536')
        self.ld(40, 4, V_L16, 'X', '0', 0)
        self.ld(44, 4, V_L16, 'X', '0', 1024)
        e('s_barrier')
        e('s_waitcnt vmcnt(0)')

    def prologueB(self):
        e = self.emit
        nb = 0
        self.clears(S_LB, True, False)
        e('s_and_b32 s58, %s, 7' % S_R)
        e('s_lshl_b32 s58, s58, 2')
        e('s_add_u32 s58, s58, %s' % S_W)
        e('s_lshl_b32 s58, s58, 17')
        e('s_lshr_b32 s59, %s, 3' % S_R)
        e('s_lshl_b32 s59, s59, 8')
        e('s_add_u32 s58, s58, s59')
        e('v_and_b32 v8, 15, v1')
        e('v_lshlrev_b32 v8, 13, v8')
        e('v_lshrrev_b32 v9, 4, v1')
        e('v_lshlrev_b32 v9, 4, v9')
        e('v_add_u32 v8, v8, v9')
        for k in range(4):
            self.ld(A_WUK + 4 * k, 4, 8, 'WUK', 's58', 64 * k, acc=True); nb += 1
        ljoin = self.label('LJ')
        e('s_waitcnt vmcnt(4)')
        e('s_barrier')
        e('s_cmp_lg_u32 %s, 0' % S_W)
        e('s_cbranch_scc1 %s' % ljoin)
        e('s_getreg_b32 s58, hwreg(HW_REG_XCC_ID)')
        e('s_and_b32 s58, s58, 15')
        e('s_mul_i32 s59, s58, s58')
        e('s_lshl_b32 s59, s59, 16')
        e('s_lshl_b32 s58, s58, 6')
        e('s_add_u32 s58, s58, s59')
        e('s_add_u32 s58, s58, 1')
        e('v_mov_b32 v8, s58')
        e('s_lshl_b32 s59, %s, 5' % S_X)
        e('v_mov_b32 v9, s59')
        e('s_mov_b64 exec, 1')
        e('buffer_atomic_add v8, v9, %s, 0 offen sc1' % srd('DBG'))
        e('s_mov_b64 exec, -1')
        self.place(ljoin)
        self.clears(S_LB, False, True)

    def heavy(self):
        e = self.emit
        skip = self.label('LS')
        e('s_cmp_eq_u32 %s, 0' % S_W)
        e('s_cbranch_scc1 %s' % skip)
        e('s_lshl_b32 s58, %s, 16' % S_R)
        e('s_sub_u32 s62, %s, 1' % S_W)
        lp = self.label('LK')
        self.place(lp)
        e('s_and_b32 s63, s62, 3')
        e('s_lshl_b32 s63, s63, 2')
        e('s_lshr_b32 s64, s62, 2')
        e('s_and_b32 s64, s64, 3')
        e('s_or_b32 s63, s63, s64')
        e('v_xor_b32 v8, s63, v1')
        e('v_lshlrev_b32 v8, 4, v8')
        e('s_lshl_b32 s64, s62, 10')
        e('s_add_u32 s65, s64, %d' % L_CKV)
        e('s_mov_b32 m0, s65')
        e('s_add_u32 s65, s58, s64')
        e('buffer_load_dwordx4 v8, %s, s65 offen lds' % srd('CKV'))
        e('s_waitcnt vmcnt(%d)' % PACE)
        e('s_add_u32 s62, s62, 3')
        e('s_cmp_lt_u32 s62, 64')
        e('s_cbranch_scc1 %s' % lp)
        self.place(skip)

    def bulk2(self, part):
        e = self.emit
        if part in (0, 1):
            e('s_lshl_b32 s58, %s, 17' % S_J)
            e('s_lshl_b32 s59, %s, 2' % S_X)
            e('s_add_u32 s59, s59, %s' % S_W)
            e('s_lshl_b32 s59, s59, 8')
            e('s_add_u32 s58, s58, s59')
            if part == 1:
                e('s_add_u32 s58, s58, 65536')
            for i in range(8 * part, 8 * part + 8):
                self.ld(A_WUV + i, 1, V_L4, 'WUV', 's58', acc=True)
                e('s_add_u32 s58, s58, 8192')
        if part in (2, 3):
            e('s_lshl_b32 s58, %s, 14' % S_R)
            e('s_lshl_b32 s59, %s, 8' % S_W)
            e('s_add_u32 s58, s58, s59')
            if part == 3:
                e('s_add_u32 s58, s58, 8192')
            for i in range(8 * (part - 2), 8 * (part - 2) + 8):
                self.ld(A_WO + i, 1, V_L4, 'WO', 's58', (i & 3) * 1024, acc=True)
                if (i & 3) == 3:
                    e('s_add_u32 s58, s58, 4096')
        if part in (4, 5):
            skip = self.label('LS')
            e('s_cmp_ge_u32 %s, 28' % S_J)
            e('s_cbranch_scc1 %s' % skip)
            e('s_mul_i32 s62, %s, 28' % S_X)
            e('s_add_u32 s62, s62, %s' % S_J)
            if part == 4:
                e('s_lshl_b32 s58, s62, 4')
                e('s_mul_i32 s59, %s, %d' % (S_W, 64 * 3584))
                e('s_add_u32 s58, s58, s59')
                e('s_add_u32 s59, s58, %d' % (256 * 3584))
                e('s_movk_i32 s63, 3584')
                e('v_mul_lo_u32 v8, v1, s63')
                self.ld(A_W1, 4, 8, 'W1', 's58', acc=True)
                self.ld(A_W1 + 4, 4, 8, 'W1', 's59', acc=True)
                self.ld(A_W3, 4, 8, 'W3', 's58', acc=True)
                self.ld(A_W3 + 4, 4, 8, 'W3', 's59', acc=True)
            else:
                e('s_lshl_b32 s58, s62, 13')
                e('s_lshl_b32 s59, %s, 8' % S_W)
                e('s_add_u32 s58, s58, s59')
                for i in range(8):
                    self.ld(A_W2 + i, 1, V_L4, 'W2', 's58', (i & 3) * 1024, acc=True)
                    if i == 3:
                        e('s_add_u32 s58, s58, 4096')
            self.place(skip)

    def flagwait(self):
        e = self.emit
        l0, l1 = self.label('LP'), self.label('LD')
        e('v_and_b32 v10, 7, v1')
        e('v_lshlrev_b32 v10, 5, v10')
        self.place(l0)
        self.ld(8, 1, 10, 'DBG', '0', 0, True)
        e('s_waitcnt vmcnt(0)')
        e('v_and_b32 v9, 63, v8')
        e('v_cmp_ne_u32 vcc, 32, v9')
        e('s_cbranch_vccz %s' % l1)
        e('s_cmp_eq_u32 %s, 0' % S_BUD)
        e('s_cbranch_scc1 %s' % l1)
        e('s_sub_u32 %s, %s, 1' % (S_BUD, S_BUD))
        e('s_branch %s' % l0)
        self.place(l1)
        e('v_readlane_b32 s58, v8, %s' % S_X)
        e('s_lshr_b32 s59, s58, 16')
        e('s_lshl_b32 s59, s59, 5')
        e('s_lshr_b32 s58, s58, 6')
        e('s_and_b32 s58, s58, 0x3ff')
        e('s_mul_i32 s58, s58, s58')
        e('s_cmp_eq_u32 s58, s59')
        e('s_cselect_b32 %s, 1, 0' % S_MODE)
        e('v_mov_b32 v8, %s' % S_MODE)
        e('v_mov_b32 v9, 0')
        e('ds_write_b32 v9, v8 offset:%d' % L_MD)

    def gather_x(self, base, lb):
        e = self.emit
        e('s_lshl_b32 s58, %s, 10' % S_W)
        e('s_add_u32 s58, s58, %s' % lb)
        e('s_add_u32 s58, s58, %d' % base)
        for x in range(1, 8):
            e('s_add_u32 s%d, s58, %d' % (63 + x, 4096 * x))
        so = ['s58'] + ['s%d' % (63 + x) for x in range(1, 8)]

        def loads():
            for x in range(8):
                self.ld(16 + 4 * x, 4, V_L16, 'WS', so[x], 0, True)
        self.poll(loads, range(16, 48), 8)
        for k in range(4):
            e('v_add_f32 v%d, v%d, v%d' % (16 + k, 16 + k, 20 + k))
            e('v_add_f32 v%d, v%d, v%d' % (24 + k, 24 + k, 28 + k))
            e('v_add_f32 v%d, v%d, v%d' % (32 + k, 32 + k, 36 + k))
            e('v_add_f32 v%d, v%d, v%d' % (40 + k, 40 + k, 44 + k))
        for k in range(4):
            e('v_add_f32 v%d, v%d, v%d' % (16 + k, 16 + k, 24 + k))
            e('v_add_f32 v%d, v%d, v%d' % (32 + k, 32 + k, 40 + k))
        for k in range(4):
            e('v_add_f32 v%d, v%d, v%d' % (16 + k, 16 + k, 32 + k))
        for k in range(4):
            self.bf16r(16 + k, 16 + k)
        for k in range(4):
            e('v_add_f32 v%d, v%d, v%d' % (V_XO + k, V_XO + k, 16 + k))
        for k in range(4):
            self.bf16r(V_XO + k, V_XO + k)

    def layernorm(self, L_XN=L_XN, L_XL=L_XL, hook=None):
        e = self.emit
        if hook == 'direct':
            e('v_lshlrev_b32 v8, 5, v1')
            for b in range(2):
                for k in range(4):
                    self.unpack(16 + 8 * b + 2 * k, 17 + 8 * b + 2 * k, 40 + 4 * b + k)
        else:
            e('v_lshlrev_b32 v8, 4, v0')
            e('ds_write_b128 v8, v[4:7] offset:%d' % L_XL)
            e('s_waitcnt lgkmcnt(0)')
            e('s_barrier')
            e('v_lshlrev_b32 v8, 5, v1')
            e('ds_read_b128 v[16:19], v8 offset:%d' % L_XL)
            e('ds_read_b128 v[20:23], v8 offset:%d' % (L_XL + 16))
            e('ds_read_b128 v[24:27], v8 offset:%d' % (L_XL + 2048))
            e('ds_read_b128 v[28:31], v8 offset:%d' % (L_XL + 2064))
            e('s_waitcnt lgkmcnt(0)')
        for b in range(2):
            x0 = 16 + 8 * b
            s = 32 + b
            e('v_add_f32 v%d, v%d, v%d' % (s, x0, x0 + 1))
            for k in range(2, 8):
                e('v_add_f32 v%d, v%d, v%d' % (s, s, x0 + k))
        self.dpp_reduce('v_add_f32', [32, 33])
        e('v_readlane_b32 s58, v32, 63')
        e('v_readlane_b32 s59, v33, 63')
        e('v_mov_b32 v34, %s' % f32hex(1.0 / 512))
        e('v_mul_f32 v36, s58, v34')
        e('v_mul_f32 v37, s59, v34')
        for b in range(2):
            x0 = 16 + 8 * b
            s = 32 + b
            for k in range(8):
                e('v_sub_f32 v38, v%d, v%d' % (x0 + k, 36 + b))
                if k == 0:
                    e('v_mul_f32 v%d, v38, v38' % s)
                else:
                    e('v_fmac_f32 v%d, v38, v38' % s)
        self.dpp_reduce('v_add_f32', [32, 33])
        e('v_readlane_b32 s58, v32, 63')
        e('v_readlane_b32 s59, v33, 63')
        e('v_mul_f32 v32, s58, v34')
        e('v_mul_f32 v33, s59, v34')
        for b in range(2):
            self.bf16r(32 + b, 32 + b)
            e('v_add_f32 v%d, %s, v%d' % (32 + b, f32hex(1e-5), 32 + b))
            self.bf16r(32 + b, 32 + b)
            e('v_sqrt_f32 v%d, v%d' % (32 + b, 32 + b))
            self.bf16r(32 + b, 32 + b)
            e('v_rcp_f32 v%d, v%d' % (34 + b, 32 + b))
            self.bf16r(36 + b, 36 + b)
        for b in range(2):
            e('v_fma_f32 v38, -v%d, v%d, 2.0' % (32 + b, 34 + b))
            e('v_mul_f32 v%d, v%d, v38' % (34 + b, 34 + b))
        for b in range(2):
            x0 = 16 + 8 * b
            for k in range(8):
                e('v_sub_f32 v%d, v%d, v%d' % (x0 + k, x0 + k, 36 + b))
            for k in range(8):
                self.bf16r(x0 + k, x0 + k)
            for k in range(8):
                e('v_mul_f32 v%d, v%d, v%d' % (x0 + k, x0 + k, 34 + b))
            for k in range(8):
                self.bf16r(x0 + k, x0 + k)
        e('s_lshl_b32 s58, %s, 12' % S_W)
        e('v_add_u32 v8, s58, v8')
        e('ds_write_b128 v8, v[16:19] offset:%d' % L_XN)
        e('ds_write_b128 v8, v[20:23] offset:%d' % (L_XN + 16))
        e('ds_write_b128 v8, v[24:27] offset:%d' % (L_XN + 2048))
        e('ds_write_b128 v8, v[28:31] offset:%d' % (L_XN + 2064))
        e('s_waitcnt lgkmcnt(0)')

    def p1(self):
        e = self.emit
        e('s_and_b32 s58, %s, 3' % S_R)
        e('s_lshl_b32 s58, s58, 2')
        e('s_add_u32 s58, s58, %s' % S_W)
        e('s_lshl_b32 s58, s58, 7')
        e('s_lshl_b32 s59, %s, 12' % S_W)
        e('s_add_u32 s58, s58, s59')
        e('v_lshrrev_b32 v8, 3, v1')
        e('v_lshlrev_b32 v8, 2, v8')
        e('v_add_u32 v8, s58, v8')
        for i in range(4):
            for b in range(2):
                e('ds_read_b32 v%d, v8 offset:%d' % (16 + 2 * i + b, L_XN + b * 2048 + i * 32))
        for k in range(16):
            e('v_mov_b32 v%d, 0' % (32 + k))
        e('s_waitcnt lgkmcnt(0)')
        for i in range(4):
            for d in range(4):
                e('v_accvgpr_read_b32 v24, a%d' % (A_WQ + 4 * i + d))
                self.unpack(25, 26, 24)
                for b in range(2):
                    e('v_fmac_f32 v%d, v%d, v25' % (32 + 8 * b + 2 * d, 16 + 2 * i + b))
                    e('v_fmac_f32 v%d, v%d, v26' % (32 + 8 * b + 2 * d + 1, 16 + 2 * i + b))
        for k in range(8):
            e('v_permlane32_swap_b32 v%d, v%d' % (32 + k, 40 + k))
            e('v_add_f32 v%d, v%d, v%d' % (32 + k, 32 + k, 40 + k))
        for k in range(4):
            e('v_permlane16_swap_b32 v%d, v%d' % (32 + k, 36 + k))
            e('v_add_f32 v%d, v%d, v%d' % (32 + k, 32 + k, 36 + k))
        for k in range(4):
            e('v_add_f32_dpp v%d, v%d, v%d row_ror:8 row_mask:0xf bank_mask:0xf' % (32 + k, 32 + k, 32 + k))
        self.clamp(range(32, 36))

    def p2(self):
        e = self.emit
        e('s_lshr_b32 s58, %s, 3' % S_R)
        e('s_lshl_b32 s58, s58, 9')
        e('s_add_u32 s58, s58, %s' % S_LB)
        e('s_add_u32 s58, s58, %d' % QP)
        for k in range(1, 16):
            e('s_add_u32 s%d, s58, %d' % (63 + k, 32768 * k))
        e('v_lshrrev_b32 v9, 5, v1')
        e('v_lshlrev_b32 v9, 14, v9')
        e('v_and_b32 v10, 31, v1')
        e('v_lshlrev_b32 v10, 4, v10')
        e('v_add_u32 v9, v9, v10')
        so = ['s58'] + ['s%d' % (63 + k) for k in range(1, 16)]

        def loads():
            for ks in range(16):
                self.ld(16 + 4 * ks, 4, 9, 'WS', so[ks], 0, True)
        self.poll(loads, range(16, 80), 8)
        n = 16
        while n > 1:
            n //= 2
            for q in range(n):
                for k in range(4):
                    e('v_add_f32 v%d, v%d, v%d' % (16 + 4 * q + k, 16 + 4 * q + k, 16 + 4 * (q + n) + k))
        e('v_cvt_pk_bf16_f32 v20, v16, v17')
        e('v_cvt_pk_bf16_f32 v21, v18, v19')
        e('s_lshl_b32 s58, %s, 9' % S_W)
        e('v_lshlrev_b32 v8, 3, v1')
        e('v_add_u32 v8, s58, v8')
        e('ds_write_b64 v8, v[20:21] offset:%d' % L_QS)
        e('v_and_b32 v8, 1, v1')
        e('v_lshlrev_b32 v8, 8, v8')
        e('v_lshrrev_b32 v9, 4, v1')
        e('v_lshlrev_b32 v9, 4, v9')
        e('v_add_u32 v8, v8, v9')
        e('v_add_u32 v8, s58, v8')
        e('s_waitcnt lgkmcnt(0)')
        for k in range(4):
            e('ds_read_b128 v[%d:%d], v8 offset:%d' % (24 + 4 * k, 27 + 4 * k, L_QS + 64 * k))
        for k in range(4):
            e('v_mov_b32 v%d, 0' % (16 + k))
        e('s_waitcnt lgkmcnt(0)')
        for k in range(4):
            e('v_mfma_f32_16x16x32_bf16 v[16:19], a[%d:%d], v[%d:%d], v[16:19]' % (A_WUK + 4 * k, A_WUK + 4 * k + 3, 24 + 4 * k, 27 + 4 * k))
        e('s_mov_b32 s58, %s' % f32hex(SCALE))
        for k in range(4):
            e('v_mul_f32 v%d, s58, v%d' % (16 + k, 16 + k))
        e('v_cvt_pk_bf16_f32 v20, v16, v17')
        e('v_cvt_pk_bf16_f32 v21, v18, v19')
        self.clamp([20, 21])
        self.pub_qa(20, False, S_LB)

    def p2b(self):
        e = self.emit
        skip = self.label('LS')
        e('s_cmp_lg_u32 %s, 0' % S_W)
        e('s_cbranch_scc1 %s' % skip)
        e('s_lshr_b32 s58, %s, 2' % S_X)
        e('s_lshl_b32 s58, s58, 15')
        e('s_lshl_b32 s59, %s, 10' % S_J)
        e('s_add_u32 s58, s58, s59')
        e('s_add_u32 s58, s58, %s' % S_LB)
        e('s_add_u32 s58, s58, %d' % QA)
        self.poll(lambda: self.ld(16, 4, V_L16, 'WS', 's58', 0, True), range(16, 20), 8)
        self.pub_ql(16, False, S_LB)
        self.place(skip)

    def p3(self, first):
        e = self.emit
        AC = 64
        PF = 16
        TMP = 16
        AO = 112
        CF = 80
        ADR = 72
        e('s_lshl_b32 s58, %s, 15' % S_X)
        e('s_lshl_b32 s59, %s, 13' % S_W)
        e('s_add_u32 s58, s58, s59')
        e('s_add_u32 s58, s58, %s' % S_LB)
        e('s_add_u32 s58, s58, %d' % QL)
        e('s_add_u32 s62, s58, 4096')

        def loads():
            for q in range(8):
                self.ld(16 + 4 * q, 4, V_L16, 'WS', 's58' if q < 4 else 's62', (q & 3) * 1024, True)
        self.poll(loads, range(16, 48), 8)
        e('v_add_u32 v8, s59, v3')
        for q in range(8):
            e('ds_write_b128 v8, v[%d:%d] offset:%d' % (16 + 4 * q, 19 + 4 * q, L_SX + 1024 * q))
        e('v_and_b32 v8, 3, v1')
        e('v_lshlrev_b32 v8, 2, v8')
        e('v_lshrrev_b32 v9, 2, v1')
        e('v_and_b32 v9, 3, v9')
        e('v_or_b32 v8, v8, v9')
        e('v_lshrrev_b32 v9, 4, v1')
        e('v_xor_b32 v8, v8, v9')
        e('v_lshlrev_b32 v8, 4, v8')
        e('v_and_b32 v9, 15, v1')
        e('v_lshlrev_b32 v9, 10, v9')
        e('v_or_b32 v8, v8, v9')
        e('s_lshl_b32 s58, %s, 14' % S_W)
        e('s_or_b32 s58, s58, %d' % L_CKV)
        e('v_or_b32 v8, s58, v8')
        for q in range(4):
            e('v_xor_b32 v%d, %d, v8' % (ADR + q, q << 6))
        e('s_waitcnt lgkmcnt(0)')
        e('s_barrier')
        if first:
            e('v_mov_b32 v9, 0')
            e('ds_read_b32 v8, v9 offset:%d' % L_MD)
            e('s_waitcnt lgkmcnt(0)')
            e('v_readfirstlane_b32 %s, v8' % S_MODE)

        def issue(g):
            base = 16 + 24 * (g & 1)
            for u in range(2):
                kk = 2 * g + u
                e('ds_read_b128 v[%d:%d], v%d offset:%d' % (base + 12 * u, base + 12 * u + 3, ADR + (kk & 3), (kk >> 2) * 256))
                e('ds_read_b128 v[%d:%d], v3 offset:%d' % (base + 12 * u + 4, base + 12 * u + 7, L_SX + kk * 2048))
                e('ds_read_b128 v[%d:%d], v3 offset:%d' % (base + 12 * u + 8, base + 12 * u + 11, L_SX + kk * 2048 + 1024))
        issue(0)
        for g in range(8):
            if g < 7:
                issue(g + 1)
                e('s_waitcnt lgkmcnt(6)')
            else:
                e('s_waitcnt lgkmcnt(0)')
            base = 16 + 24 * (g & 1)
            for u in range(2):
                for ht in range(2):
                    c = '0' if (g == 0 and u == 0) else 'v[%d:%d]' % (AC + 4 * ht, AC + 4 * ht + 3)
                    e('v_mfma_f32_16x16x32_bf16 v[%d:%d], v[%d:%d], v[%d:%d], %s' % (
                        AC + 4 * ht, AC + 4 * ht + 3, base + 12 * u, base + 12 * u + 3,
                        base + 12 * u + 4 + 4 * ht, base + 12 * u + 7 + 4 * ht, c))
        e('v_and_b32 v8, 15, v1')
        e('v_lshlrev_b32 v8, 4, v8')
        e('s_lshl_b32 s58, %s, 2' % S_W)
        e('v_add_u32 v9, s58, v8')
        for ht in range(2):
            e('v_max3_f32 v%d, v%d, v%d, v%d' % (10 + ht, AC + 4 * ht, AC + 4 * ht + 1, AC + 4 * ht + 2))
        for ht in range(2):
            e('v_max_f32 v%d, v%d, v%d' % (10 + ht, 10 + ht, AC + 4 * ht + 3))
        for ht in range(2):
            self.xswap('v_max_f32', 10 + ht, 12 + ht, 16)
        for ht in range(2):
            self.xswap('v_max_f32', 10 + ht, 12 + ht, 32)
        for ht in range(2):
            e('ds_write_b32 v9, v%d offset:%d' % (10 + ht, L_MX + 256 * ht))
        e('s_waitcnt lgkmcnt(0)')
        e('s_barrier')
        for ht in range(2):
            e('ds_read_b128 v[%d:%d], v8 offset:%d' % (16 + 4 * ht, 19 + 4 * ht, L_MX + 256 * ht))
        e('v_and_b32 v14, 15, v1')
        e('v_mul_u32_u24 v14, 144, v14')
        e('v_lshrrev_b32 v15, 4, v1')
        e('v_lshlrev_b32 v15, 3, v15')
        e('v_add_u32 v14, v14, v15')
        e('s_lshl_b32 s58, %s, 5' % S_W)
        e('v_add_u32 v14, s58, v14')
        e('s_waitcnt lgkmcnt(0)')
        for ht in range(2):
            e('v_max3_f32 v%d, v%d, v%d, v%d' % (10 + ht, 16 + 4 * ht, 17 + 4 * ht, 18 + 4 * ht))
        for ht in range(2):
            e('v_max_f32 v%d, v%d, v%d' % (10 + ht, 10 + ht, 19 + 4 * ht))
        for ht in range(2):
            for i in range(4):
                e('v_sub_f32 v%d, v%d, v%d' % (AC + 4 * ht + i, AC + 4 * ht + i, 10 + ht))
        for k in range(8):
            e('v_exp_f32 v%d, v%d' % (AC + k, AC + k))
        for ht in range(2):
            e('v_cvt_pk_bf16_f32 v%d, v%d, v%d' % (16 + 2 * ht, AC + 4 * ht, AC + 4 * ht + 1))
            e('v_cvt_pk_bf16_f32 v%d, v%d, v%d' % (17 + 2 * ht, AC + 4 * ht + 2, AC + 4 * ht + 3))
        for ht in range(2):
            e('ds_write_b64 v14, v[%d:%d] offset:%d' % (16 + 2 * ht, 17 + 2 * ht, L_PL + 16 * 144 * ht))
        for ht in range(2):
            e('v_add_f32 v%d, v%d, v%d' % (10 + ht, AC + 4 * ht, AC + 4 * ht + 1))
            e('v_add_f32 v%d, v%d, v%d' % (12 + ht, AC + 4 * ht + 2, AC + 4 * ht + 3))
        for ht in range(2):
            e('v_add_f32 v%d, v%d, v%d' % (10 + ht, 10 + ht, 12 + ht))
        for ht in range(2):
            self.xswap('v_add_f32', 10 + ht, 12 + ht, 16)
        for ht in range(2):
            self.xswap('v_add_f32', 10 + ht, 12 + ht, 32)
        for ht in range(2):
            e('ds_write_b32 v9, v%d offset:%d' % (10 + ht, L_LW + 256 * ht))
        e('v_and_b32 v9, 15, v1')
        e('v_lshrrev_b32 v9, 2, v9')
        e('v_lshrrev_b32 v11, 5, v1')
        e('v_lshlrev_b32 v8, 3, v11')
        e('v_add_u32 v8, v8, v9')
        e('v_lshlrev_b32 v8, 10, v8')
        e('v_lshlrev_b32 v9, 6, v9')
        e('v_or_b32 v8, v8, v9')
        e('v_lshrrev_b32 v9, 4, v1')
        e('v_xor_b32 v9, v9, v11')
        e('v_and_b32 v9, 1, v9')
        e('v_lshlrev_b32 v9, 5, v9')
        e('v_or_b32 v8, v8, v9')
        e('v_and_b32 v9, 2, v1')
        e('v_lshlrev_b32 v9, 3, v9')
        e('v_or_b32 v8, v8, v9')
        e('v_and_b32 v9, 1, v1')
        e('v_lshlrev_b32 v9, 3, v9')
        e('v_or_b32 v8, v8, v9')
        e('s_lshl_b32 s58, %s, 8' % S_W)
        e('s_or_b32 s58, s58, %d' % L_CKV)
        e('v_or_b32 v8, s58, v8')
        for nt in range(4):
            for j in range(2):
                e('v_xor_b32 v%d, 0x%x, v8' % (ADR + 2 * nt + j, (nt << 6) | (j * 0x1010)))
        e('v_and_b32 v9, 31, v1')
        e('v_mul_u32_u24 v9, 144, v9')
        e('v_lshlrev_b32 v11, 4, v11')
        e('v_add_u32 v9, v9, v11')
        e('s_waitcnt lgkmcnt(0)')
        e('s_barrier')
        for ks in range(4):
            e('ds_read_b128 v[%d:%d], v9 offset:%d' % (PF + 4 * ks, PF + 4 * ks + 3, L_PL + 32 * ks))
        for kstep in range(4):
            for nt in range(4):
                for j in range(2):
                    e('ds_read_b64_tr_b16 v[%d:%d], v%d offset:%d' % (CF + 4 * nt + 2 * j + 16 * (kstep & 1), CF + 4 * nt + 2 * j + 1 + 16 * (kstep & 1), ADR + 2 * nt + j, kstep * 16384))
            for nt in range(4):
                e('s_waitcnt lgkmcnt(%d)' % (6 - 2 * nt))
                c = '0' if kstep == 0 else 'v[%d:%d]' % (AO + 16 * nt, AO + 16 * nt + 15)
                e('v_mfma_f32_32x32x16_bf16 v[%d:%d], v[%d:%d], v[%d:%d], %s' % (
                    AO + 16 * nt, AO + 16 * nt + 15, PF + 4 * kstep, PF + 4 * kstep + 3,
                    CF + 4 * nt + 16 * (kstep & 1), CF + 4 * nt + 3 + 16 * (kstep & 1), c))
        e('v_and_b32 v8, 31, v1')
        e('v_lshlrev_b32 v8, 4, v8')
        e('ds_read_b128 v[48:51], v8 offset:%d' % L_MX)
        e('ds_read_b128 v[52:55], v8 offset:%d' % L_LW)
        for nt in range(4):
            for g in range(4):
                a = AO + 16 * nt + 4 * g
                d = TMP + 8 * nt + 2 * g
                e('v_cvt_pk_bf16_f32 v%d, v%d, v%d' % (d, a, a + 1))
                e('v_cvt_pk_bf16_f32 v%d, v%d, v%d' % (d + 1, a + 2, a + 3))
        self.pub_op(lambda nt, g: TMP + 8 * nt + 2 * g, False, S_LB)
        e('s_waitcnt lgkmcnt(0)')
        e('v_max3_f32 v10, v48, v49, v50')
        e('v_max_f32 v10, v10, v51')
        e('v_add_f32 v12, v52, v53')
        e('v_add_f32 v13, v54, v55')
        e('v_add_f32 v12, v12, v13')
        e('v_cmp_gt_u32 vcc, 32, v1')
        e('v_cndmask_b32 v13, v12, v10, vcc')
        self.clamp([13])
        e('s_waitcnt vmcnt(0)')
        e('s_barrier')
        self.pub_st(13, False, S_LB)

    def p3b(self):
        e = self.emit
        e('s_lshr_b32 s58, %s, 2' % S_X)
        e('s_lshl_b32 s58, s58, 3')
        e('s_lshr_b32 s59, %s, 2' % S_J)
        e('s_add_u32 s58, s58, s59')
        e('s_lshl_b32 s58, s58, 12')
        e('s_and_b32 s62, %s, 3' % S_X)
        e('s_lshl_b32 s62, s62, 10')
        e('s_add_u32 s58, s58, s62')
        e('s_add_u32 s58, s58, %s' % S_LB)
        e('s_add_u32 s58, s58, %d' % ST)
        e('v_and_b32 v9, 31, v1')
        e('v_lshlrev_b32 v9, 5, v9')
        e('s_lshl_b32 s62, %s, 5' % S_X)
        e('s_lshl_b32 s63, %s, 3' % S_W)
        e('s_add_u32 s62, s62, s63')
        e('s_lshl_b32 s62, s62, 15')
        e('s_lshl_b32 s59, s59, 12')
        e('s_add_u32 s62, s62, s59')
        e('s_and_b32 s59, %s, 3' % S_J)
        e('s_lshl_b32 s59, s59, 10')
        e('s_add_u32 s62, s62, s59')
        e('s_add_u32 s62, s62, %s' % S_LB)
        e('s_add_u32 s64, s62, %d' % OP)
        for q in range(1, 8):
            e('s_add_u32 s%d, s64, %d' % (64 + q, 32768 * q))

        def loads():
            self.ld(16, 4, 9, 'WS', 's58', 0, True)
            self.ld(20, 4, 9, 'WS', 's58', 16, True)
        self.poll(loads, range(16, 24), 8)
        for q in range(8):
            self.ld(24 + 4 * q, 4, V_L16, 'WS', 's%d' % (64 + q), 0, True)
        for h in range(4):
            e('v_mov_b32 v%d, v%d' % (56 + h, 16 + h))
        self.dpp_reduce('v_max_f32', [56, 57, 58, 59])
        for h in range(4):
            e('v_readlane_b32 s%d, v%d, 63' % (72 + h, 56 + h))
        for h in range(4):
            e('v_subrev_f32 v%d, s%d, v%d' % (56 + h, 72 + h, 16 + h))
        for h in range(4):
            e('v_exp_f32 v%d, v%d' % (56 + h, 56 + h))
        for h in range(4):
            e('v_mul_f32 v%d, v%d, v%d' % (60 + h, 56 + h, 20 + h))
        self.dpp_reduce('v_add_f32', [60, 61, 62, 63], full=False)
        for h in range(4):
            e('v_readlane_b32 s%d, v%d, 31' % (76 + h, 60 + h))
        for k in range(8):
            e('v_mov_b32 v%d, 0' % (64 + k))
        e('s_lshl_b32 s58, %s, 3' % S_W)
        for q in range(8):
            e('s_waitcnt vmcnt(%d)' % (7 - q))
            for h in range(4):
                e('v_readlane_b32 s%d, v%d, s58' % (80 + h, 56 + h))
            e('s_add_u32 s58, s58, 1')
            for c in range(2):
                for hp in range(2):
                    src = 24 + 4 * q + 2 * c + hp
                    self.unpack(10, 11, src)
                    e('v_fma_f32 v%d, s%d, v10, v%d' % (64 + 4 * c + 2 * hp, 80 + 2 * hp, 64 + 4 * c + 2 * hp))
                    e('v_fma_f32 v%d, s%d, v11, v%d' % (64 + 4 * c + 2 * hp + 1, 80 + 2 * hp + 1, 64 + 4 * c + 2 * hp + 1))
        e('v_lshlrev_b32 v8, 5, v0')
        e('ds_write_b128 v8, v[64:67] offset:%d' % L_AC)
        e('ds_write_b128 v8, v[68:71] offset:%d' % (L_AC + 16))
        e('s_waitcnt lgkmcnt(0)')
        e('s_barrier')
        e('v_lshlrev_b32 v8, 3, v0')
        for w in range(4):
            e('ds_read_b64 v[%d:%d], v8 offset:%d' % (16 + 2 * w, 17 + 2 * w, L_AC + 2048 * w))
        e('s_waitcnt lgkmcnt(0)')
        for k in range(2):
            e('v_add_f32 v%d, v%d, v%d' % (16 + k, 16 + k, 18 + k))
            e('v_add_f32 v%d, v%d, v%d' % (20 + k, 20 + k, 22 + k))
        for k in range(2):
            e('v_add_f32 v%d, v%d, v%d' % (16 + k, 16 + k, 20 + k))
        self.clamp([16, 17])
        self.pub_xo(16, S_LB)
        for k in range(8):
            e('v_mov_b32 v%d, s%d' % (24 + k, 72 + k))
        self.clamp(range(24, 32))
        self.pub_xs(24, S_LB)

    def p4(self):
        e = self.emit
        e('s_lshl_b32 s58, %s, 13' % S_X)
        e('s_lshl_b32 s59, %s, 8' % S_J)
        e('s_add_u32 s58, s58, s59')
        e('s_lshl_b32 s59, %s, 2' % S_W)
        e('s_add_u32 s58, s58, s59')
        e('s_add_u32 s58, s58, %s' % S_LB)
        e('s_add_u32 s58, s58, %d' % XO)
        e('s_add_u32 s59, s58, %d' % (4 * 8 * 8192))
        e('v_lshrrev_b32 v9, 4, v1')
        e('v_lshlrev_b32 v10, 16, v9')
        e('v_and_b32 v11, 15, v1')
        e('v_lshlrev_b32 v11, 4, v11')
        e('v_add_u32 v10, v10, v11')
        e('s_lshl_b32 s62, %s, 5' % S_X)
        e('s_lshl_b32 s63, %s, 2' % S_W)
        e('s_add_u32 s62, s62, s63')
        e('s_add_u32 s62, s62, %s' % S_LB)
        e('s_add_u32 s62, s62, %d' % XS)
        e('v_lshlrev_b32 v9, 8, v9')

        def loads():
            self.ld(16, 1, 10, 'WS', 's58', 0, True)
            self.ld(17, 1, 10, 'WS', 's59', 0, True)
            self.ld(18, 1, 9, 'WS', 's62', 0, True)
            self.ld(19, 1, 9, 'WS', 's62', 1024, True)
            self.ld(20, 1, 9, 'WS', 's62', 16, True)
            self.ld(21, 1, 9, 'WS', 's62', 1040, True)
        self.poll(loads, range(16, 22), 8)
        for b in range(2):
            e('v_mov_b32 v%d, v%d' % (22 + b, 18 + b))
        for b in range(2):
            self.xswap('v_max_f32', 22 + b, 24 + b, 16)
        for b in range(2):
            self.xswap('v_max_f32', 22 + b, 24 + b, 32)
        for b in range(2):
            e('v_sub_f32 v%d, v%d, v%d' % (18 + b, 18 + b, 22 + b))
        for b in range(2):
            e('v_exp_f32 v%d, v%d' % (18 + b, 18 + b))
        for b in range(2):
            e('v_mul_f32 v%d, v%d, v%d' % (16 + b, 16 + b, 18 + b))
            e('v_mul_f32 v%d, v%d, v%d' % (20 + b, 20 + b, 18 + b))
        for r in (16, 17, 20, 21):
            self.xswap('v_add_f32', r, 24, 16)
        for r in (16, 17, 20, 21):
            self.xswap('v_add_f32', r, 24, 32)
        for b in range(2):
            e('v_rcp_f32 v%d, v%d' % (22 + b, 20 + b))
        for b in range(2):
            e('v_mul_f32 v%d, v%d, v%d' % (16 + b, 16 + b, 22 + b))
        for b in range(2):
            for c in range(16):
                e('v_readlane_b32 s%d, v%d, %d' % (64 + 16 * b + c, 16 + b, c))
        for k in range(4):
            e('v_mov_b32 v%d, 0' % (24 + k))
        for c in range(16):
            e('v_accvgpr_read_b32 v28, a%d' % (A_WUV + c))
            self.unpack(29, 30, 28)
            for b in range(2):
                e('v_fma_f32 v%d, s%d, v29, v%d' % (24 + 2 * b, 64 + 16 * b + c, 24 + 2 * b))
                e('v_fma_f32 v%d, s%d, v30, v%d' % (25 + 2 * b, 64 + 16 * b + c, 25 + 2 * b))
        self.clamp(range(24, 28))
        self.pub_cp(24, 26, False, S_LB)

    def p5(self):
        e = self.emit
        e('s_lshl_b32 s58, %s, 6' % S_R)
        e('s_lshl_b32 s59, %s, 4' % S_W)
        e('s_add_u32 s58, s58, s59')
        e('s_add_u32 s58, s58, %s' % S_LB)
        e('s_add_u32 s58, s58, %d' % CP)
        e('v_and_b32 v9, 31, v1')
        e('v_lshlrev_b32 v9, 15, v9')
        e('v_lshrrev_b32 v10, 5, v1')
        e('v_lshlrev_b32 v10, 14, v10')
        e('v_add_u32 v9, v9, v10')
        self.poll(lambda: self.ld(16, 4, 9, 'WS', 's58', 0, True), range(16, 20), 8)
        self.dpp_reduce('v_add_f32', [16, 17, 18, 19], full=False)
        for k in range(4):
            self.bf16r(16 + k, 16 + k)
        e('v_lshrrev_b32 v9, 5, v1')
        e('v_lshlrev_b32 v9, 6, v9')
        e('s_lshl_b32 s58, %s, 4' % S_W)
        e('v_add_u32 v9, s58, v9')
        e('s_mov_b32 s60, 0x80000000')
        e('s_mov_b32 s61, 0x80000000')
        e('s_mov_b64 exec, s[60:61]')
        e('ds_write_b128 v9, v[16:19] offset:%d' % L_CT)
        e('s_mov_b64 exec, -1')
        e('s_waitcnt lgkmcnt(0)')
        e('s_barrier')
        e('v_mov_b32 v9, 0')
        for q in range(8):
            e('ds_read_b128 v[%d:%d], v9 offset:%d' % (32 + 4 * q, 35 + 4 * q, L_CT + 16 * q))
        for k in range(4):
            e('v_mov_b32 v%d, 0' % (24 + k))
        e('s_waitcnt lgkmcnt(0)')
        for d in range(16):
            e('v_accvgpr_read_b32 v28, a%d' % (A_WO + d))
            self.unpack(29, 30, 28)
            for b in range(2):
                e('v_fmac_f32 v%d, v%d, v29' % (24 + 2 * b, 32 + 16 * b + d))
                e('v_fmac_f32 v%d, v%d, v30' % (25 + 2 * b, 32 + 16 * b + d))
        self.clamp(range(24, 28))
        self.pub_po(PO, 24, 26, False, S_LB)

    def p6(self, src, dst, npart, lds):
        e = self.emit
        e('s_lshl_b32 s58, %s, 5' % S_X)
        e('s_lshl_b32 s59, %s, 3' % S_W)
        e('s_add_u32 s58, s58, s59')
        e('s_lshl_b32 s58, s58, 12')
        e('s_lshl_b32 s59, %s, 7' % S_J)
        e('s_add_u32 s58, s58, s59')
        e('s_add_u32 s58, s58, %s' % S_LB)
        e('s_add_u32 s58, s58, %d' % src)
        e('v_lshrrev_b32 v9, 3, v1')
        e('v_lshlrev_b32 v9, 12, v9')
        e('v_and_b32 v10, 7, v1')
        e('v_lshlrev_b32 v10, 4, v10')
        e('v_add_u32 v9, v9, v10')
        if npart < 32:
            for k in range(4):
                e('v_mov_b32 v%d, 0' % (16 + k))
            e('v_lshrrev_b32 v10, 3, v0')
            e('v_cmp_gt_u32 s[60:61], %d, v10' % npart)

        def loads():
            if npart < 32:
                e('s_mov_b64 exec, s[60:61]')
            self.ld(16, 4, 9, 'WS', 's58', 0, True)
            if npart < 32:
                e('s_mov_b64 exec, -1')
        self.poll(loads, range(16, 20), 8)
        for k in range(4):
            e('v_add_f32_dpp v%d, v%d, v%d row_ror:8 row_mask:0xf bank_mask:0xf' % (16 + k, 16 + k, 16 + k))
        for k in range(4):
            self.xswap('v_add_f32', 16 + k, 20 + k, 16)
        for k in range(4):
            self.xswap('v_add_f32', 16 + k, 20 + k, 32)
        e('s_lshl_b32 s58, %s, 7' % S_W)
        e('v_and_b32 v9, 7, v1')
        e('v_lshlrev_b32 v9, 4, v9')
        e('v_add_u32 v10, s58, v9')
        e('ds_write_b128 v10, v[16:19] offset:%d' % lds)
        e('s_waitcnt lgkmcnt(0)')
        e('s_barrier')
        for w in range(4):
            e('ds_read_b128 v[%d:%d], v9 offset:%d' % (16 + 4 * w, 19 + 4 * w, lds + 128 * w))
        e('s_waitcnt lgkmcnt(0)')
        for k in range(4):
            e('v_add_f32 v%d, v%d, v%d' % (16 + k, 16 + k, 20 + k))
            e('v_add_f32 v%d, v%d, v%d' % (24 + k, 24 + k, 28 + k))
        for k in range(4):
            e('v_add_f32 v%d, v%d, v%d' % (16 + k, 16 + k, 24 + k))
        self.clamp(range(16, 20))
        self.pub_xp(dst, 16, S_LB)

    def p7(self):
        e = self.emit
        skip = self.label('LS')
        e('s_cmp_ge_u32 %s, 28' % S_J)
        e('s_cbranch_scc1 %s' % skip)
        e('s_lshl_b32 s58, %s, 12' % S_W)
        e('s_lshl_b32 s59, %s, 8' % S_W)
        e('s_add_u32 s58, s58, s59')
        e('v_add_u32 v8, s58, v2')
        for rr in range(2):
            for b in range(2):
                e('ds_read_b32 v%d, v8 offset:%d' % (16 + 2 * rr + b, L_XN + b * 2048 + rr * 1024))
        for k in range(32):
            e('v_mov_b32 v%d, 0' % (32 + k))
        e('s_waitcnt lgkmcnt(0)')
        for mat, ab in enumerate((A_W1, A_W3)):
            for rr in range(2):
                for d in range(4):
                    e('v_accvgpr_read_b32 v24, a%d' % (ab + 4 * rr + d))
                    self.unpack(25, 26, 24)
                    for b in range(2):
                        a = 32 + 16 * mat + 8 * b + 2 * d
                        e('v_fmac_f32 v%d, v%d, v25' % (a, 16 + 2 * rr + b))
                        e('v_fmac_f32 v%d, v%d, v26' % (a + 1, 16 + 2 * rr + b))
        for k in range(16):
            e('v_permlane32_swap_b32 v%d, v%d' % (32 + k, 48 + k))
            e('v_add_f32 v%d, v%d, v%d' % (32 + k, 32 + k, 48 + k))
        for k in range(8):
            e('v_permlane16_swap_b32 v%d, v%d' % (32 + k, 40 + k))
            e('v_add_f32 v%d, v%d, v%d' % (32 + k, 32 + k, 40 + k))
        self.row_reduce('v_add_f32', list(range(32, 40)))
        e('v_lshrrev_b32 v9, 4, v1')
        e('v_lshlrev_b32 v9, 5, v9')
        e('s_lshl_b32 s58, %s, 7' % S_W)
        e('v_add_u32 v9, s58, v9')
        e('s_mov_b32 s60, 0x80008000')
        e('s_mov_b32 s61, 0x80008000')
        e('s_mov_b64 exec, s[60:61]')
        e('ds_write_b128 v9, v[32:35] offset:%d' % L_FR)
        e('ds_write_b128 v9, v[36:39] offset:%d' % (L_FR + 16))
        e('s_mov_b64 exec, -1')
        e('s_waitcnt lgkmcnt(0)')
        e('s_barrier')
        e('v_and_b32 v9, 15, v1')
        e('v_lshlrev_b32 v9, 2, v9')
        for w in range(4):
            e('ds_read_b32 v%d, v9 offset:%d' % (16 + w, L_FR + 128 * w))
            e('ds_read_b32 v%d, v9 offset:%d' % (20 + w, L_FR + 128 * w + 64))
        e('s_waitcnt lgkmcnt(0)')
        e('v_add_f32 v16, v16, v17')
        e('v_add_f32 v18, v18, v19')
        e('v_add_f32 v20, v20, v21')
        e('v_add_f32 v22, v22, v23')
        e('v_add_f32 v16, v16, v18')
        e('v_add_f32 v20, v20, v22')
        self.bf16r(16, 16)
        self.bf16r(20, 20)
        e('v_mul_f32 v17, %s, v16' % f32hex(-1.4426950408889634))
        e('v_exp_f32 v17, v17')
        e('v_add_f32 v17, 1.0, v17')
        e('v_rcp_f32 v17, v17')
        e('v_mul_f32 v17, v17, v16')
        self.bf16r(17, 17)
        e('v_mul_f32 v17, v17, v20')
        self.bf16r(17, 17)
        for k in range(16):
            e('v_readlane_b32 s%d, v17, %d' % (64 + k, k))
        for k in range(4):
            e('v_mov_b32 v%d, 0' % (24 + k))
        for f in range(8):
            e('v_accvgpr_read_b32 v28, a%d' % (A_W2 + f))
            self.unpack(29, 30, 28)
            for b in range(2):
                e('v_fma_f32 v%d, s%d, v29, v%d' % (24 + 2 * b, 64 + 8 * b + f, 24 + 2 * b))
                e('v_fma_f32 v%d, s%d, v30, v%d' % (25 + 2 * b, 64 + 8 * b + f, 25 + 2 * b))
        self.clamp(range(24, 28))
        self.pub_po(PO2, 24, 26, False, S_LB)
        done = self.label('LS')
        e('s_branch %s' % done)
        self.place(skip)
        e('s_barrier')
        self.nbar -= 1
        self.place(done)

    def final(self):
        e = self.emit
        e('s_cmp_lg_u32 %s, 0' % S_R)
        e('s_cbranch_scc1 L_END')
        self.gather_x(XP2, S_LB)
        e('v_cvt_pk_bf16_f32 v16, v4, v5')
        e('v_cvt_pk_bf16_f32 v17, v6, v7')
        e('v_lshlrev_b32 v8, 3, v0')
        self.st(16, 2, 8, 'OUT')

    def unpack_x0(self):
        self.unpack(4, 5, 6)
        self.unpack(6, 7, 7)

    def a_phases(self, L):
        self.layernorm(hook='direct' if L == 0 else None)
        self.p1()
        self.pub_qp(32, L == 0, S_LB)
        self.emit('s_barrier')
        self.phase_end()
        self.p3(L == 0)
        self.phase_end()
        self.p3b()
        self.emit('s_barrier')
        self.phase_end()

    def b_phases(self, L):
        self.p4()
        self.phase_end()
        self.p5()
        self.phase_end()
        self.p6(PO, XP, 32, L_R6)
        self.phase_end()
        if L == 0:
            self.unpack_x0()
        self.gather_x(XP, S_LB)
        self.layernorm(L_XN2, L_XL2)
        self.p7()
        self.phase_end()
        self.p6(PO2, XP2, 28, L_R8)
        self.emit('s_barrier')
        self.phase_end()

    def count_bar(self, fn):
        g = G(None, False)
        fn(g)
        return g.nbar

    def build(self):
        e = self.emit
        nA = self.count_bar(lambda g: g.a_phases(1))
        nB = self.count_bar(lambda g: g.b_phases(1))
        self.prologue()
        self.prologueA()
        self.unpack_x0()
        for L in range(2):
            self.a_phases(L)
            if L == 0:
                for i in range(16, 20):
                    e('v_mov_b32 v%d, -1' % i)
                e('s_mov_b32 s99, 0x%x' % LAYER)
                self.clears('s99', True, True)
                e('s_waitcnt vmcnt(0)')
                self.idle_barriers(3)
                self.gather_x(XP, S_LB)
                self.idle_barriers(nB - 3)
                self.gather_x(XP2, S_LB)
                e('s_mov_b32 %s, 0x%x' % (S_LB, LAYER))
        e('s_branch L_END')
        self.place('L_GROUPB')
        self.hist = []
        self.prologueB()
        self.heavy()
        prof = self.prof
        nA0 = self.count_bar(lambda g: g.a_phases(0))
        for L in range(2):
            if L == 0:
                self.flagwait()
                self.ts('flag')
            else:
                self.idle_barriers(1)
                e('s_mov_b32 %s, 0x%x' % (S_LB, LAYER))
            self.idle_barriers(1)
            self.p2()
            self.phase_end()
            self.p2b()
            if L == 0:
                assert nA0 - 1 == 6
                for part in range(6):
                    self.bulk2(part)
                    self.idle_barriers(1)
            else:
                self.prof = False
                e('s_mov_b32 s99, 0')
                self.gather_x(XP2, 's99')
                self.prof = prof
                self.idle_barriers(nA - 2)
            self.b_phases(L)
        self.prof = prof
        self.final()
        self.place('L_END')
        e('s_endpgm')


def main():
    stop = None
    outp = 'interleave_layers__compressed_kv_cla__glu_gated_swiglu__decode.s'
    for a in sys.argv[1:]:
        if a.startswith('stop='):
            stop = int(a[5:])
        if a.startswith('out='):
            outp = a[4:]
    prof = any(a == 'prof' for a in sys.argv[1:])
    g = G(stop, prof)
    g.build()
    if prof:
        open(outp + '.ts', 'w').write('\n'.join(g.tsnames))
    ref = open('interleave_layers__compressed_kv_cla__glu_gated_swiglu__decode.s.ref').read()
    head = []
    for l in ref.split('\n'):
        if l.startswith('; @launch'):
            break
        head.append(l)
    s = '\n'.join(head) + '\n'
    s += '; @launch grid=(256,1,1) block=(512,1,1) lds=%d\n' % LDS_BYTES
    s += '.amdgcn_target "amdgcn-amd-amdhsa--gfx950"\n.text\n.globl %s\n.p2align 8\n.type %s,@function\n%s:\n' % (KNAME, KNAME, KNAME)
    s += g.text()
    s += '''.section .rodata,"a"
.p2align 6
.amdhsa_kernel %s
  .amdhsa_next_free_vgpr 256
  .amdhsa_next_free_sgpr 102
  .amdhsa_accum_offset 176
  .amdhsa_group_segment_fixed_size 0
  .amdhsa_kernarg_size 104
  .amdhsa_user_sgpr_count 2
  .amdhsa_user_sgpr_kernarg_segment_ptr 1
  .amdhsa_system_sgpr_workgroup_id_x 1
.end_amdhsa_kernel
''' % KNAME
    open(outp, 'w').write(s)


if __name__ == '__main__':
    main()
```

```python
import sys, os
sys.path.insert(0, os.path.dirname(os.path.abspath(__file__)))
from asmlib import Asm

KNAME = 'interleave_layers__compressed_kv_cla__glu_gated_swiglu__decode_kernel'

QP = 0x000000
QA = 0x020000
ST = 0x030000
XS = 0x040000
XO = 0x050000
XP = 0x0D0000
XP2 = 0x0E0000
CP = 0x100000
PO = 0x200000
PO2 = 0x300000
OP = 0x400000
QL = 0xC00000
LAYER = 0x1000000

L_CKV = 65536
L_XN = 0
L_AC = 0
L_XL = 16384
L_SX = 20480
L_RQ = 53248
L_QS = 55296
L_CT = 57344
L_R6 = 57600
L_FR = 58112
L_R8 = 58624
L_XN2 = L_XN
L_XL2 = L_XL
L_MD = 59136
L_MX = 59392
L_LW = 59904
L_PL = 60416
LDS_BYTES = 131072

S_WG, S_R, S_W, S_LB, S_BUD, S_MODE = 's2', 's3', 's4', 's5', 's6', 's7'
SRD = dict(X=8, CKV=12, WQ=16, WUK=20, WUV=24, WO=28, W1=32, W3=36, W2=40, OUT=44, DBG=48, WS=52)
S_X, S_J = 's56', 's57'


def srd(n):
    b = SRD[n]
    return 's[%d:%d]' % (b, b + 3)


def vr(a, n=1):
    return 'v%d' % a if n == 1 else 'v[%d:%d]' % (a, a + n - 1)


def ar(a, n=1):
    return 'a%d' % a if n == 1 else 'a[%d:%d]' % (a, a + n - 1)


A_WQ = 0
A_WUK = 56
A_WUV, A_WO = 0, 16
A_W1, A_W3, A_W2 = 16, 24, 32
V_LANE, V_L4, V_L16 = 1, 2, 3
V_XO = 4

SCALE = 0.08838834764831845 * 1.4426950408889634
import struct


def f32hex(x):
    return '0x%08x' % struct.unpack('<I', struct.pack('<f', x))[0]


NT = set(os.environ.get('NT', 'CKV,WQ,WUV,WO,W2').split(','))
PRE = int(os.environ.get('PRE', '3'))
SKIP = set(os.environ.get('SKIP', '').split(','))
WNAME = {1: 'dword', 2: 'dwordx2', 4: 'dwordx4'}


class G(Asm):
    def __init__(self, stop=None, prof=False):
        super().__init__()
        self.stop = stop
        self.phase_no = 0
        self.prof = prof
        self.tsnames = []
        self.nbar = 0

    def emit(self, text):
        if text.strip() == 's_barrier':
            self.nbar += 1
        super().emit(text)

    __call__ = emit

    def idle_barriers(self, n):
        for _ in range(n):
            self.emit('s_barrier')

    def ld(self, dst, n, vaddr, buf, soff='0', imm=0, sc1=False, acc=False):
        if buf in SKIP:
            return
        d = ar(dst, n) if acc else vr(dst, n)
        t = 'buffer_load_%s %s, %s, %s, %s offen' % (WNAME[n], d, vr(vaddr), srd(buf), soff)
        if imm:
            assert 0 <= imm < 4096
            t += ' offset:%d' % imm
        if sc1:
            t += ' sc1'
        if buf in NT:
            t += ' nt'
        self.emit(t)

    def st(self, src, n, vaddr, buf, soff='0', imm=0, sc1=False):
        t = 'buffer_store_%s %s, %s, %s, %s offen' % (WNAME[n], vr(src, n), vr(vaddr), srd(buf), soff)
        if imm:
            assert 0 <= imm < 4096
            t += ' offset:%d' % imm
        if sc1:
            t += ' sc1'
        self.emit(t)

    def clamp(self, regs):
        for r in regs:
            self.emit('v_min_u32 v%d, -2, v%d' % (r, r))

    def local_stores(self, fn, clear=False):
        if clear:
            fn(True)
            return
        lf, le = self.label('LF'), self.label('LE')
        self.emit('s_cmp_eq_u32 %s, 1' % S_MODE)
        self.emit('s_cbranch_scc1 %s' % lf)
        fn(True)
        self.emit('s_branch %s' % le)
        self.place(lf)
        fn(False)
        self.place(le)

    def poll(self, loads, regs, tmp):
        l0, l1 = self.label('LP'), self.label('LD')
        self.place(l0)
        loads()
        self.emit('s_waitcnt vmcnt(0)')
        regs = list(regs)
        if len(regs) == 1:
            self.emit('v_mov_b32 v%d, v%d' % (tmp, regs[0]))
        elif len(regs) == 2:
            self.emit('v_max_u32 v%d, v%d, v%d' % (tmp, regs[0], regs[1]))
        else:
            self.emit('v_max3_u32 v%d, v%d, v%d, v%d' % (tmp, regs[0], regs[1], regs[2]))
            i = 3
            while i < len(regs):
                if i + 1 < len(regs):
                    self.emit('v_max3_u32 v%d, v%d, v%d, v%d' % (tmp, tmp, regs[i], regs[i + 1]))
                    i += 2
                else:
                    self.emit('v_max_u32 v%d, v%d, v%d' % (tmp, tmp, regs[i]))
                    i += 1
        self.emit('v_cmp_eq_u32 vcc, -1, v%d' % tmp)
        self.emit('s_cbranch_vccz %s' % l1)
        self.emit('s_cmp_eq_u32 %s, 0' % S_BUD)
        self.emit('s_cbranch_scc1 %s' % l1)
        self.emit('s_sub_u32 %s, %s, 1' % (S_BUD, S_BUD))
        self.emit('s_branch %s' % l0)
        self.place(l1)
        self.ts('poll')

    def dpp_reduce(self, op, regs, full=True):
        steps = ['row_shr:1', 'row_shr:2', 'row_shr:4', 'row_shr:8']
        for s in steps:
            for r in regs:
                self.emit('%s_dpp v%d, v%d, v%d %s row_mask:0xf bank_mask:0xf' % (op, r, r, r, s))
        for r in regs:
            self.emit('%s_dpp v%d, v%d, v%d row_bcast:15 row_mask:0xa bank_mask:0xf' % (op, r, r, r))
        if full:
            for r in regs:
                self.emit('%s_dpp v%d, v%d, v%d row_bcast:31 row_mask:0xc bank_mask:0xf' % (op, r, r, r))

    def row_reduce(self, op, regs):
        for s in ['row_shr:1', 'row_shr:2', 'row_shr:4', 'row_shr:8']:
            for r in regs:
                self.emit('%s_dpp v%d, v%d, v%d %s row_mask:0xf bank_mask:0xf' % (op, r, r, r, s))

    def bf16r(self, dst, src, tmp=None):
        self.emit('v_cvt_pk_bf16_f32 v%d, v%d, v%d' % (dst, src, src))
        self.emit('v_lshlrev_b32 v%d, 16, v%d' % (dst, dst))

    def unpack(self, lo, hi, src):
        self.emit('v_lshlrev_b32 v%d, 16, v%d' % (lo, src))
        self.emit('v_and_b32 v%d, 0xffff0000, v%d' % (hi, src))

    def xswap(self, op, r, t, which):
        self.emit('v_mov_b32 v%d, v%d' % (t, r))
        self.emit('v_permlane%d_swap_b32 v%d, v%d' % (which, r, t))
        self.emit('%s v%d, v%d, v%d' % (op, r, r, t))

    def ts(self, name, R=14):
        if not self.prof:
            return
        idx = len(self.tsnames)
        self.tsnames.append(name)
        skip = self.label('LT')
        self.emit('s_cmp_lg_u32 %s, 0' % S_W)
        self.emit('s_cbranch_scc1 %s' % skip)
        self.emit('s_memrealtime s[100:101]')
        self.emit('s_waitcnt lgkmcnt(0)')
        self.emit('v_mov_b32 v%d, s100' % R)
        self.emit('s_lshl_b32 s100, %s, 8' % S_R)
        self.emit('s_add_u32 s100, s100, 0x3000000')
        self.emit('v_mov_b32 v%d, 0' % (R + 1))
        self.emit('s_mov_b64 exec, 1')
        self.emit('buffer_store_dword v%d, v%d, %s, s100 offen offset:%d' % (R, R + 1, srd('WS'), idx * 4))
        self.emit('s_mov_b64 exec, -1')
        self.place(skip)

    def phase_end(self):
        self.phase_no += 1
        self.ts('end%d' % self.phase_no)
        if self.stop is not None and self.phase_no == self.stop:
            self.emit('s_branch L_END')

    def pub_qp(self, data, clear, lb):
        skip = self.label('LS')
        self.emit('s_cmp_ge_u32 %s, 2' % S_W)
        self.emit('s_cbranch_scc1 %s' % skip)
        self.emit('s_and_b32 s58, %s, 3' % S_R)
        self.emit('s_lshl_b32 s58, s58, 1')
        self.emit('s_add_u32 s58, s58, %s' % S_W)
        self.emit('s_lshl_b32 s58, s58, 14')
        self.emit('s_lshr_b32 s59, %s, 2' % S_R)
        self.emit('s_lshl_b32 s59, s59, 8')
        self.emit('s_add_u32 s58, s58, s59')
        self.emit('s_add_u32 s58, s58, %s' % lb)
        self.local_stores(lambda sc: self.st(data, 1, V_L4, 'WS', 's58', QP, sc), clear)
        self.place(skip)

    def pub_qa(self, data, clear, lb):
        self.emit('s_and_b32 s58, %s, 7' % S_R)
        self.emit('s_lshl_b32 s58, s58, 1')
        self.emit('s_lshr_b32 s59, %s, 1' % S_W)
        self.emit('s_add_u32 s58, s58, s59')
        self.emit('s_lshl_b32 s58, s58, 11')
        self.emit('s_lshr_b32 s59, %s, 7' % S_R)
        self.emit('s_lshl_b32 s59, s59, 10')
        self.emit('s_add_u32 s58, s58, s59')
        self.emit('s_and_b32 s59, %s, 1' % S_W)
        self.emit('s_lshl_b32 s59, s59, 9')
        self.emit('s_add_u32 s58, s58, s59')
        self.emit('s_lshr_b32 s59, %s, 3' % S_R)
        self.emit('s_and_b32 s59, s59, 15')
        self.emit('s_lshl_b32 s59, s59, 4')
        self.emit('s_add_u32 s58, s58, s59')
        self.emit('s_add_u32 s58, s58, %s' % lb)
        self.emit('s_add_u32 s58, s58, %d' % QA)
        self.emit('v_and_b32 v8, 1, v%d' % V_LANE)
        self.emit('v_lshlrev_b32 v8, 15, v8')
        self.emit('v_lshrrev_b32 v9, 5, v%d' % V_LANE)
        self.emit('v_lshlrev_b32 v9, 8, v9')
        self.emit('v_add_u32 v8, v8, v9')
        self.emit('v_lshrrev_b32 v9, 4, v%d' % V_LANE)
        self.emit('v_and_b32 v9, 1, v9')
        self.emit('v_lshlrev_b32 v9, 3, v9')
        self.emit('v_add_u32 v8, v8, v9')
        self.emit('s_mov_b32 s60, 0x00030003')
        self.emit('s_mov_b32 s61, 0x00030003')
        self.emit('s_mov_b64 exec, s[60:61]')
        self.st(data, 2, 8, 'WS', 's58', 0, True)
        self.emit('s_mov_b64 exec, -1')

    def pub_ql(self, data, clear, lb):
        self.emit('s_lshl_b32 s58, %s, 10' % S_R)
        self.emit('s_add_u32 s58, s58, %s' % lb)
        self.emit('s_add_u32 s58, s58, %d' % QL)
        self.local_stores(lambda sc: self.st(data, 4, V_L16, 'WS', 's58', 0, sc), clear)

    def pub_op(self, datafn, clear, lb):
        self.emit('s_lshl_b32 s58, %s, 15' % S_R)
        self.emit('s_lshl_b32 s59, %s, 10' % S_W)
        self.emit('s_add_u32 s58, s58, s59')
        self.emit('s_add_u32 s58, s58, %d' % OP)
        self.emit('s_add_u32 s59, s58, 8192')
        self.emit('s_add_u32 s62, s58, 16384')
        self.emit('s_add_u32 s63, s58, 24576')
        self.emit('v_lshrrev_b32 v8, 5, v%d' % V_LANE)
        self.emit('v_lshlrev_b32 v8, 12, v8')
        self.emit('v_and_b32 v9, 31, v%d' % V_LANE)
        self.emit('v_lshlrev_b32 v9, 3, v9')
        self.emit('v_add_u32 v8, v8, v9')
        so = ['s58', 's59', 's62', 's63']

        def f(sc):
            for nt in range(4):
                for g in range(4):
                    self.st(datafn(nt, g), 2, 8, 'WS', so[g], nt * 256, sc)
        self.local_stores(f, clear)

    def pub_st(self, data, clear, lb):
        skip = self.label('LS')
        self.emit('s_cmp_lg_u32 %s, 0' % S_W)
        self.emit('s_cbranch_scc1 %s' % skip)
        self.emit('s_lshr_b32 s58, %s, 7' % S_R)
        self.emit('s_lshl_b32 s58, s58, 15')
        self.emit('s_and_b32 s59, %s, 127' % S_R)
        self.emit('s_lshl_b32 s59, s59, 5')
        self.emit('s_add_u32 s58, s58, s59')
        self.emit('s_add_u32 s58, s58, %s' % lb)
        self.emit('s_add_u32 s58, s58, %d' % ST)
        self.emit('v_and_b32 v8, 31, v%d' % V_LANE)
        self.emit('v_lshrrev_b32 v9, 2, v8')
        self.emit('v_lshlrev_b32 v9, 12, v9')
        self.emit('v_and_b32 v8, 3, v8')
        self.emit('v_lshlrev_b32 v8, 2, v8')
        self.emit('v_add_u32 v8, v8, v9')
        self.emit('v_lshrrev_b32 v9, 5, v%d' % V_LANE)
        self.emit('v_lshlrev_b32 v9, 4, v9')
        self.emit('v_add_u32 v8, v8, v9')
        self.local_stores(lambda sc: self.st(data, 1, 8, 'WS', 's58', 0, sc), clear)
        self.place(skip)

    def pub_xo(self, data, lb):
        self.emit('s_lshl_b32 s58, %s, 11' % S_R)
        self.emit('s_add_u32 s58, s58, %s' % lb)
        self.emit('s_add_u32 s58, s58, %d' % XO)
        self.emit('v_lshlrev_b32 v8, 3, v0')
        self.st(data, 2, 8, 'WS', 's58', 0, True)

    def pub_xs(self, data, lb):
        skip = self.label('LS')
        self.emit('s_and_b32 s58, %s, 3' % S_J)
        self.emit('s_or_b32 s58, s58, %s' % S_W)
        self.emit('s_cmp_lg_u32 s58, 0')
        self.emit('s_cbranch_scc1 %s' % skip)
        self.emit('s_lshr_b32 s58, %s, 2' % S_R)
        self.emit('s_lshl_b32 s58, s58, 5')
        self.emit('s_add_u32 s58, s58, %s' % lb)
        self.emit('s_add_u32 s58, s58, %d' % XS)
        self.emit('v_mov_b32 v8, 0')
        self.emit('s_mov_b64 exec, 1')
        self.st(data, 4, 8, 'WS', 's58', 0, True)
        self.st(data + 4, 4, 8, 'WS', 's58', 16, True)
        self.emit('s_mov_b64 exec, -1')
        self.place(skip)

    def pub_cp(self, d0, d1, clear, lb):
        self.emit('s_lshl_b32 s58, %s, 15' % S_J)
        self.emit('s_lshl_b32 s59, %s, 2' % S_X)
        self.emit('s_add_u32 s59, s59, %s' % S_W)
        self.emit('s_lshl_b32 s59, s59, 9')
        self.emit('s_add_u32 s58, s58, s59')
        self.emit('s_add_u32 s58, s58, %s' % lb)
        self.emit('s_add_u32 s58, s58, %d' % CP)
        self.emit('s_add_u32 s59, s58, 16384')
        self.emit('v_lshlrev_b32 v8, 3, v%d' % V_LANE)

        def f(sc):
            self.st(d0, 2, 8, 'WS', 's58', 0, sc)
            self.st(d1, 2, 8, 'WS', 's59', 0, sc)
        self.local_stores(f, clear)

    def pub_po(self, base, d0, d1, clear, lb):
        self.emit('s_lshl_b32 s58, %s, 12' % S_R)
        self.emit('s_lshl_b32 s59, %s, 9' % S_W)
        self.emit('s_add_u32 s58, s58, s59')
        self.emit('s_add_u32 s58, s58, %s' % lb)
        self.emit('s_add_u32 s58, s58, %d' % base)
        self.emit('v_lshlrev_b32 v8, 3, v%d' % V_LANE)

        def f(sc):
            self.st(d0, 2, 8, 'WS', 's58', 0, sc)
            self.st(d1, 2, 8, 'WS', 's58', 2048, sc)
        self.local_stores(f, clear)

    def pub_xp(self, base, data, lb):
        skip = self.label('LS')
        self.emit('s_cmp_lg_u32 %s, 0' % S_W)
        self.emit('s_cbranch_scc1 %s' % skip)
        self.emit('s_lshl_b32 s58, %s, 7' % S_R)
        self.emit('s_add_u32 s58, s58, %s' % lb)
        self.emit('s_add_u32 s58, s58, %d' % base)
        self.emit('s_mov_b64 exec, 0xff')
        self.st(data, 4, V_L16, 'WS', 's58', 0, True)
        self.emit('s_mov_b64 exec, -1')
        self.place(skip)

    def clears(self, lb, early, late):
        if early:
            self.pub_qp(16, True, lb)
            self.pub_qa(16, True, lb)
            skip = self.label('LS')
            self.emit('s_cmp_lg_u32 %s, 0' % S_W)
            self.emit('s_cbranch_scc1 %s' % skip)
            self.pub_ql(16, True, lb)
            self.place(skip)
        if late:
            e = self.emit
            self.pub_st(16, True, lb)
            for i in range(20, 24):
                self.emit('v_mov_b32 v%d, -1' % i)
            self.pub_xs(16, lb)
            self.pub_xp(XP, 16, lb)
            self.pub_xp(XP2, 16, lb)
            e('s_lshl_b32 s59, %s, 10' % S_W)
            e('s_lshl_b32 s58, %s, 12' % S_R)
            e('s_add_u32 s58, s58, s59')
            e('s_add_u32 s58, s58, %s' % lb)
            e('s_add_u32 s62, s58, %d' % PO)
            self.st(16, 4, V_L16, 'WS', 's62', 0, True)
            e('s_add_u32 s62, s58, %d' % PO2)
            self.st(16, 4, V_L16, 'WS', 's62', 0, True)
            e('s_lshl_b32 s58, %s, 1' % S_J)
            e('s_lshr_b32 s62, %s, 1' % S_W)
            e('s_add_u32 s58, s58, s62')
            e('s_lshl_b32 s58, s58, 14')
            e('s_lshl_b32 s62, %s, 11' % S_X)
            e('s_add_u32 s58, s58, s62')
            e('s_and_b32 s62, %s, 1' % S_W)
            e('s_lshl_b32 s62, s62, 10')
            e('s_add_u32 s58, s58, s62')
            e('s_add_u32 s58, s58, %s' % lb)
            e('s_add_u32 s58, s58, %d' % CP)
            self.st(16, 4, V_L16, 'WS', 's58', 0, True)
            skip = self.label('LS')
            e('s_cmp_ge_u32 %s, 2' % S_W)
            e('s_cbranch_scc1 %s' % skip)
            e('s_lshl_b32 s58, %s, 11' % S_R)
            e('s_add_u32 s58, s58, s59')
            e('s_add_u32 s58, s58, %s' % lb)
            e('s_add_u32 s58, s58, %d' % XO)
            self.st(16, 4, V_L16, 'WS', 's58', 0, True)
            self.place(skip)

    def prologue(self):
        e = self.emit
        e('s_cmp_ge_u32 s2, 256')
        e('s_cbranch_scc1 L_END')
        e('s_load_dwordx16 s[64:79], s[0:1], 0')
        e('s_load_dwordx8 s[80:87], s[0:1], 64')
        e('s_load_dwordx2 s[88:89], s[0:1], 96')
        e('v_lshrrev_b32 v1, 6, v0')
        e('v_readfirstlane_b32 %s, v1' % S_W)
        e('v_and_b32 v1, 63, v0')
        e('v_and_b32 v0, 255, v0')
        e('s_lshr_b32 s98, %s, 2' % S_W)
        e('s_and_b32 %s, %s, 3' % (S_W, S_W))
        e('v_lshlrev_b32 v2, 2, v1')
        e('v_lshlrev_b32 v3, 4, v1')
        e('s_and_b32 s58, s2, 7')
        e('s_lshl_b32 s58, s58, 5')
        e('s_lshr_b32 s59, s2, 3')
        e('s_or_b32 %s, s58, s59' % S_R)
        e('s_lshr_b32 %s, %s, 5' % (S_X, S_R))
        e('s_and_b32 %s, %s, 31' % (S_J, S_R))
        e('s_mov_b32 %s, 0' % S_LB)
        e('s_mov_b32 %s, 200000' % S_BUD)
        e('s_mov_b32 %s, 0' % S_MODE)
        e('s_mov_b32 s97, 0')
        e('s_waitcnt lgkmcnt(0)')
        ptrs = dict(X=(64, 2048), CKV=(66, 16777216), WQ=(68, 4194304), WUK=(70, 4194304), WUV=(72, 4194304),
                    WO=(74, 4194304), W1=(78, 1835008), W3=(80, 1835008), W2=(82, 1835008), OUT=(84, 2048),
                    DBG=(86, 256), WS=(88, 268435456))
        for n, (p, sz) in ptrs.items():
            b = SRD[n]
            e('s_mov_b32 s%d, s%d' % (b, p))
            e('s_and_b32 s%d, s%d, 0xffff' % (b + 1, p + 1))
            e('s_mov_b32 s%d, %d' % (b + 2, sz))
            e('s_mov_b32 s%d, 0x20000' % (b + 3))
        for i in range(16, 20):
            e('v_mov_b32 v%d, -1' % i)
        e('s_lshl_b32 s58, %s, 9' % S_W)
        e('v_lshlrev_b32 v8, 3, v1')
        self.ld(6, 2, 8, 'X', 's58')
        e('s_cmp_eq_u32 s98, 1')
        e('s_cbranch_scc1 L_GROUPB')

    def prologueA(self):
        e = self.emit
        nb = 0
        self.ts('start')
        e('s_and_b32 s58, %s, 3' % S_R)
        e('s_lshl_b32 s58, s58, 2')
        e('s_add_u32 s58, s58, %s' % S_W)
        e('s_lshl_b32 s58, s58, 18')
        e('s_lshr_b32 s59, %s, 2' % S_R)
        e('s_lshl_b32 s59, s59, 7')
        e('s_add_u32 s58, s58, s59')
        e('v_lshrrev_b32 v8, 3, v1')
        e('v_lshlrev_b32 v8, 13, v8')
        e('v_and_b32 v9, 7, v1')
        e('v_lshlrev_b32 v9, 4, v9')
        e('v_add_u32 v8, v8, v9')
        for i in range(4):
            self.ld(A_WQ + 4 * i, 4, 8, 'WQ', 's58', acc=True); nb += 1
            if i < 3:
                e('s_add_u32 s58, s58, 65536')
        e('s_barrier')
        self.heavy()
        e('s_waitcnt vmcnt(16)')

    def prologueB(self):
        e = self.emit
        nb = 0
        self.clears(S_LB, True, False)
        e('s_and_b32 s58, %s, 7' % S_R)
        e('s_lshl_b32 s58, s58, 2')
        e('s_add_u32 s58, s58, %s' % S_W)
        e('s_lshl_b32 s58, s58, 17')
        e('s_lshr_b32 s59, %s, 3' % S_R)
        e('s_lshl_b32 s59, s59, 8')
        e('s_add_u32 s58, s58, s59')
        e('v_and_b32 v8, 15, v1')
        e('v_lshlrev_b32 v8, 13, v8')
        e('v_lshrrev_b32 v9, 4, v1')
        e('v_lshlrev_b32 v9, 4, v9')
        e('v_add_u32 v8, v8, v9')
        for k in range(4):
            self.ld(A_WUK + 4 * k, 4, 8, 'WUK', 's58', 64 * k, acc=True); nb += 1
        ljoin = self.label('LJ')
        e('s_waitcnt vmcnt(4)')
        e('s_barrier')
        e('s_cmp_lg_u32 %s, 0' % S_W)
        e('s_cbranch_scc1 %s' % ljoin)
        e('s_getreg_b32 s58, hwreg(HW_REG_XCC_ID)')
        e('s_and_b32 s58, s58, 15')
        e('s_mul_i32 s59, s58, s58')
        e('s_lshl_b32 s59, s59, 16')
        e('s_lshl_b32 s58, s58, 6')
        e('s_add_u32 s58, s58, s59')
        e('s_add_u32 s58, s58, 1')
        e('v_mov_b32 v8, s58')
        e('s_lshl_b32 s59, %s, 5' % S_X)
        e('v_mov_b32 v9, s59')
        e('s_mov_b64 exec, 1')
        e('buffer_atomic_add v8, v9, %s, 0 offen sc1' % srd('DBG'))
        e('s_mov_b64 exec, -1')
        self.place(ljoin)
        self.clears(S_LB, False, True)

    def heavy(self):
        e = self.emit
        e('s_lshl_b32 s58, %s, 16' % S_R)
        e('s_lshl_b32 s59, %s, 14' % S_W)
        e('s_add_u32 s58, s58, s59')
        e('s_add_u32 s59, s59, %d' % L_CKV)
        e('s_mul_i32 s62, %s, 5' % S_R)
        e('s_lshl_b32 s63, %s, 2' % S_W)
        e('s_add_u32 s62, s62, s63')
        e('s_lshr_b32 s63, %s, 4' % S_R)
        e('s_add_u32 s62, s62, s63')
        for i in range(16):
            e('s_and_b32 s62, s62, 15')
            e('s_and_b32 s63, s62, 3')
            e('s_lshl_b32 s63, s63, 2')
            e('s_lshr_b32 s64, s62, 2')
            e('s_or_b32 s63, s63, s64')
            e('v_xor_b32 v8, s63, v1')
            e('v_lshlrev_b32 v8, 4, v8')
            e('s_lshl_b32 s64, s62, 10')
            e('s_add_u32 s65, s59, s64')
            e('s_mov_b32 m0, s65')
            e('s_add_u32 s65, s58, s64')
            if 'CKV' not in SKIP:
                e('buffer_load_dwordx4 v8, %s, s65 offen%s lds' % (srd('CKV'), ' nt' if 'CKV' in NT else ''))
            e('s_add_u32 s62, s62, 1')

    def bulk2(self, part):
        e = self.emit
        if part in (0, 1):
            e('s_lshl_b32 s58, %s, 17' % S_J)
            e('s_lshl_b32 s59, %s, 2' % S_X)
            e('s_add_u32 s59, s59, %s' % S_W)
            e('s_lshl_b32 s59, s59, 8')
            e('s_add_u32 s58, s58, s59')
            if part == 1:
                e('s_add_u32 s58, s58, 65536')
            for i in range(8 * part, 8 * part + 8):
                self.ld(A_WUV + i, 1, V_L4, 'WUV', 's58', acc=True)
                e('s_add_u32 s58, s58, 8192')
        if part in (2, 3):
            e('s_lshl_b32 s58, %s, 14' % S_R)
            e('s_lshl_b32 s59, %s, 8' % S_W)
            e('s_add_u32 s58, s58, s59')
            if part == 3:
                e('s_add_u32 s58, s58, 8192')
            for i in range(8 * (part - 2), 8 * (part - 2) + 8):
                self.ld(A_WO + i, 1, V_L4, 'WO', 's58', (i & 3) * 1024, acc=True)
                if (i & 3) == 3:
                    e('s_add_u32 s58, s58, 4096')
        if part in (4, 5):
            skip = self.label('LS')
            e('s_cmp_ge_u32 %s, 28' % S_J)
            e('s_cbranch_scc1 %s' % skip)
            e('s_mul_i32 s62, %s, 28' % S_X)
            e('s_add_u32 s62, s62, %s' % S_J)
            if part == 4:
                e('s_lshl_b32 s58, s62, 4')
                e('s_mul_i32 s59, %s, %d' % (S_W, 64 * 3584))
                e('s_add_u32 s58, s58, s59')
                e('s_add_u32 s59, s58, %d' % (256 * 3584))
                e('s_movk_i32 s63, 3584')
                e('v_mul_lo_u32 v8, v1, s63')
                self.ld(A_W1, 4, 8, 'W1', 's58', acc=True)
                self.ld(A_W1 + 4, 4, 8, 'W1', 's59', acc=True)
                self.ld(A_W3, 4, 8, 'W3', 's58', acc=True)
                self.ld(A_W3 + 4, 4, 8, 'W3', 's59', acc=True)
            else:
                e('s_lshl_b32 s58, s62, 13')
                e('s_lshl_b32 s59, %s, 8' % S_W)
                e('s_add_u32 s58, s58, s59')
                for i in range(8):
                    self.ld(A_W2 + i, 1, V_L4, 'W2', 's58', (i & 3) * 1024, acc=True)
                    if i == 3:
                        e('s_add_u32 s58, s58, 4096')
            self.place(skip)

    def flagwait(self):
        e = self.emit
        l0, l1 = self.label('LP'), self.label('LD')
        e('v_and_b32 v10, 7, v1')
        e('v_lshlrev_b32 v10, 5, v10')
        self.place(l0)
        self.ld(8, 1, 10, 'DBG', '0', 0, True)
        e('s_waitcnt vmcnt(0)')
        e('v_and_b32 v9, 63, v8')
        e('v_cmp_ne_u32 vcc, 32, v9')
        e('s_cbranch_vccz %s' % l1)
        e('s_cmp_eq_u32 %s, 0' % S_BUD)
        e('s_cbranch_scc1 %s' % l1)
        e('s_sub_u32 %s, %s, 1' % (S_BUD, S_BUD))
        e('s_branch %s' % l0)
        self.place(l1)
        e('v_readlane_b32 s58, v8, %s' % S_X)
        e('s_lshr_b32 s59, s58, 16')
        e('s_lshl_b32 s59, s59, 5')
        e('s_lshr_b32 s58, s58, 6')
        e('s_and_b32 s58, s58, 0x3ff')
        e('s_mul_i32 s58, s58, s58')
        e('s_cmp_eq_u32 s58, s59')
        e('s_cselect_b32 %s, 1, 0' % S_MODE)
        if os.environ.get('SLOW', '0') == '1':
            e('s_mov_b32 %s, 0' % S_MODE)
        e('v_mov_b32 v8, %s' % S_MODE)
        e('v_mov_b32 v9, 0')
        e('ds_write_b32 v9, v8 offset:%d' % L_MD)

    def gather_x(self, base, lb):
        e = self.emit
        e('s_lshl_b32 s58, %s, 10' % S_W)
        e('s_add_u32 s58, s58, %s' % lb)
        e('s_add_u32 s58, s58, %d' % base)
        for x in range(1, 8):
            e('s_add_u32 s%d, s58, %d' % (63 + x, 4096 * x))
        so = ['s58'] + ['s%d' % (63 + x) for x in range(1, 8)]


        def loads():
            for x in range(8):
                self.ld(16 + 4 * x, 4, V_L16, 'WS', so[x], 0, True)
        self.poll(loads, range(16, 48), 8)
        for k in range(4):
            e('v_add_f32 v%d, v%d, v%d' % (16 + k, 16 + k, 20 + k))
            e('v_add_f32 v%d, v%d, v%d' % (24 + k, 24 + k, 28 + k))
            e('v_add_f32 v%d, v%d, v%d' % (32 + k, 32 + k, 36 + k))
            e('v_add_f32 v%d, v%d, v%d' % (40 + k, 40 + k, 44 + k))
        for k in range(4):
            e('v_add_f32 v%d, v%d, v%d' % (16 + k, 16 + k, 24 + k))
            e('v_add_f32 v%d, v%d, v%d' % (32 + k, 32 + k, 40 + k))
        for k in range(4):
            e('v_add_f32 v%d, v%d, v%d' % (16 + k, 16 + k, 32 + k))
        for k in range(4):
            self.bf16r(16 + k, 16 + k)
        for k in range(4):
            e('v_add_f32 v%d, v%d, v%d' % (V_XO + k, V_XO + k, 16 + k))
        for k in range(4):
            self.bf16r(V_XO + k, V_XO + k)

    def layernorm(self, L_XN=L_XN, L_XL=L_XL, hook=None):
        e = self.emit
        e('v_add_f32 v16, v4, v5')
        e('v_add_f32 v17, v6, v7')
        e('v_add_f32 v16, v16, v17')
        self.dpp_reduce('v_add_f32', [16])
        e('s_lshl_b32 s58, %s, 2' % S_W)
        e('v_mov_b32 v9, s58')
        e('s_and_b32 s59, s58, 8')
        e('v_mov_b32 v10, s59')
        e('v_readlane_b32 s60, v16, 63')
        e('v_mov_b32 v17, s60')
        e('ds_write_b32 v9, v17 offset:%d' % L_XL)
        e('s_waitcnt lgkmcnt(0)')
        e('s_barrier')
        e('ds_read_b64 v[16:17], v10 offset:%d' % L_XL)
        e('v_mov_b32 v22, %s' % f32hex(1.0 / 512))
        e('s_waitcnt lgkmcnt(0)')
        e('v_add_f32 v16, v16, v17')
        e('v_mul_f32 v20, v16, v22')
        for k in range(4):
            e('v_sub_f32 v%d, v%d, v20' % (24 + k, 4 + k))
        e('v_mul_f32 v16, v24, v24')
        e('v_mul_f32 v17, v26, v26')
        e('v_fmac_f32 v16, v25, v25')
        e('v_fmac_f32 v17, v27, v27')
        e('v_add_f32 v16, v16, v17')
        self.dpp_reduce('v_add_f32', [16])
        self.bf16r(20, 20)
        e('v_readlane_b32 s60, v16, 63')
        e('v_mov_b32 v17, s60')
        e('ds_write_b32 v9, v17 offset:%d' % (L_XL + 16))
        for k in range(4):
            e('v_sub_f32 v%d, v%d, v20' % (24 + k, 4 + k))
        for k in range(4):
            self.bf16r(24 + k, 24 + k)
        e('s_waitcnt lgkmcnt(0)')
        e('s_barrier')
        e('ds_read_b64 v[16:17], v10 offset:%d' % (L_XL + 16))
        e('v_lshlrev_b32 v8, 4, v0')
        e('s_waitcnt lgkmcnt(0)')
        e('v_add_f32 v16, v16, v17')
        e('v_mul_f32 v16, v16, v22')
        self.bf16r(16, 16)
        e('v_add_f32 v16, %s, v16' % f32hex(1e-5))
        self.bf16r(16, 16)
        e('v_sqrt_f32 v16, v16')
        self.bf16r(16, 16)
        e('v_rcp_f32 v17, v16')
        e('v_fma_f32 v18, -v16, v17, 2.0')
        e('v_mul_f32 v17, v17, v18')
        for k in range(4):
            e('v_mul_f32 v%d, v%d, v17' % (24 + k, 24 + k))
        for k in range(4):
            self.bf16r(24 + k, 24 + k)
        e('ds_write_b128 v8, v[24:27] offset:%d' % L_XN)
        e('s_waitcnt lgkmcnt(0)')
        e('s_barrier')

    def p1(self):
        e = self.emit
        e('s_and_b32 s58, %s, 3' % S_R)
        e('s_lshl_b32 s58, s58, 2')
        e('s_add_u32 s58, s58, %s' % S_W)
        e('s_lshl_b32 s58, s58, 7')
        e('v_lshrrev_b32 v8, 3, v1')
        e('v_lshlrev_b32 v8, 2, v8')
        e('v_add_u32 v8, s58, v8')
        for i in range(4):
            for b in range(2):
                e('ds_read_b32 v%d, v8 offset:%d' % (16 + 2 * i + b, L_XN + b * 2048 + i * 32))
        for k in range(16):
            e('v_mov_b32 v%d, 0' % (32 + k))
        e('s_waitcnt lgkmcnt(0)')
        for i in range(4):
            for d in range(4):
                e('v_accvgpr_read_b32 v24, a%d' % (A_WQ + 4 * i + d))
                self.unpack(25, 26, 24)
                for b in range(2):
                    e('v_fmac_f32 v%d, v%d, v25' % (32 + 8 * b + 2 * d, 16 + 2 * i + b))
                    e('v_fmac_f32 v%d, v%d, v26' % (32 + 8 * b + 2 * d + 1, 16 + 2 * i + b))
        for k in range(8):
            e('v_permlane32_swap_b32 v%d, v%d' % (32 + k, 40 + k))
            e('v_add_f32 v%d, v%d, v%d' % (32 + k, 32 + k, 40 + k))
        for k in range(4):
            e('v_permlane16_swap_b32 v%d, v%d' % (32 + k, 36 + k))
            e('v_add_f32 v%d, v%d, v%d' % (32 + k, 32 + k, 36 + k))
        for k in range(4):
            e('v_add_f32_dpp v%d, v%d, v%d row_ror:8 row_mask:0xf bank_mask:0xf' % (32 + k, 32 + k, 32 + k))
        e('v_and_b32 v8, 7, v1')
        e('v_lshlrev_b32 v8, 5, v8')
        e('v_lshrrev_b32 v9, 4, v1')
        e('v_and_b32 v9, 1, v9')
        e('v_lshlrev_b32 v9, 4, v9')
        e('v_add_u32 v8, v8, v9')
        e('v_lshrrev_b32 v9, 5, v1')
        e('v_lshlrev_b32 v9, 8, v9')
        e('v_add_u32 v8, v8, v9')
        e('s_lshl_b32 s58, %s, 9' % S_W)
        e('v_add_u32 v8, s58, v8')
        e('ds_write_b128 v8, v[32:35] offset:%d' % L_RQ)
        e('s_waitcnt lgkmcnt(0)')
        e('s_barrier')
        e('s_and_b32 s58, %s, 1' % S_W)
        e('s_lshl_b32 s58, s58, 8')
        e('v_add_u32 v8, s58, v2')
        for w in range(4):
            e('ds_read_b32 v%d, v8 offset:%d' % (16 + w, L_RQ + 512 * w))
        e('s_waitcnt lgkmcnt(0)')
        e('v_add_f32 v16, v16, v17')
        e('v_add_f32 v18, v18, v19')
        e('v_add_f32 v16, v16, v18')
        self.clamp([16])

    def p2(self):
        e = self.emit
        e('s_lshr_b32 s58, %s, 3' % S_R)
        e('s_lshl_b32 s58, s58, 9')
        e('s_add_u32 s58, s58, %s' % S_LB)
        e('s_add_u32 s58, s58, %d' % QP)
        e('s_add_u32 s59, s58, 32768')
        e('s_add_u32 s62, s58, 65536')
        e('s_add_u32 s63, s58, 98304')
        e('v_lshrrev_b32 v9, 5, v1')
        e('v_lshlrev_b32 v9, 14, v9')
        e('v_and_b32 v10, 31, v1')
        e('v_lshlrev_b32 v10, 4, v10')
        e('v_add_u32 v9, v9, v10')
        so = ['s58', 's59', 's62', 's63']

        def loads():
            for ks in range(4):
                self.ld(16 + 4 * ks, 4, 9, 'WS', so[ks], 0, True)
        self.poll(loads, range(16, 32), 8)
        for k in range(4):
            e('v_add_f32 v%d, v%d, v%d' % (16 + k, 16 + k, 20 + k))
            e('v_add_f32 v%d, v%d, v%d' % (24 + k, 24 + k, 28 + k))
        for k in range(4):
            e('v_add_f32 v%d, v%d, v%d' % (16 + k, 16 + k, 24 + k))
        e('v_cvt_pk_bf16_f32 v20, v16, v17')
        e('v_cvt_pk_bf16_f32 v21, v18, v19')
        e('s_lshl_b32 s58, %s, 9' % S_W)
        e('v_lshlrev_b32 v8, 3, v1')
        e('v_add_u32 v8, s58, v8')
        e('ds_write_b64 v8, v[20:21] offset:%d' % L_QS)
        e('v_and_b32 v8, 1, v1')
        e('v_lshlrev_b32 v8, 8, v8')
        e('v_lshrrev_b32 v9, 4, v1')
        e('v_lshlrev_b32 v9, 4, v9')
        e('v_add_u32 v8, v8, v9')
        e('v_add_u32 v8, s58, v8')
        e('s_waitcnt lgkmcnt(0)')
        for k in range(4):
            e('ds_read_b128 v[%d:%d], v8 offset:%d' % (24 + 4 * k, 27 + 4 * k, L_QS + 64 * k))
        for k in range(4):
            e('v_mov_b32 v%d, 0' % (16 + k))
        e('s_waitcnt lgkmcnt(0)')
        for k in range(4):
            e('v_mfma_f32_16x16x32_bf16 v[16:19], a[%d:%d], v[%d:%d], v[16:19]' % (A_WUK + 4 * k, A_WUK + 4 * k + 3, 24 + 4 * k, 27 + 4 * k))
        e('s_mov_b32 s58, %s' % f32hex(SCALE))
        for k in range(4):
            e('v_mul_f32 v%d, s58, v%d' % (16 + k, 16 + k))
        e('v_cvt_pk_bf16_f32 v20, v16, v17')
        e('v_cvt_pk_bf16_f32 v21, v18, v19')
        self.clamp([20, 21])
        self.pub_qa(20, False, S_LB)

    def p2b(self):
        e = self.emit
        skip = self.label('LS')
        e('s_cmp_lg_u32 %s, 0' % S_W)
        e('s_cbranch_scc1 %s' % skip)
        e('s_lshr_b32 s58, %s, 2' % S_X)
        e('s_lshl_b32 s58, s58, 15')
        e('s_lshl_b32 s59, %s, 10' % S_J)
        e('s_add_u32 s58, s58, s59')
        e('s_add_u32 s58, s58, %s' % S_LB)
        e('s_add_u32 s58, s58, %d' % QA)
        self.poll(lambda: self.ld(16, 4, V_L16, 'WS', 's58', 0, True), range(16, 20), 8)
        self.pub_ql(16, False, S_LB)
        self.place(skip)

    def p3(self, first):
        e = self.emit
        AC = 64
        PF = 16
        TMP = 16
        AO = 112
        CF = 80
        ADR = 72
        e('s_lshl_b32 s58, %s, 15' % S_X)
        e('s_lshl_b32 s59, %s, 13' % S_W)
        e('s_add_u32 s58, s58, s59')
        e('s_add_u32 s58, s58, %s' % S_LB)
        e('s_add_u32 s58, s58, %d' % QL)
        e('s_add_u32 s62, s58, 4096')

        def loads():
            for q in range(8):
                self.ld(16 + 4 * q, 4, V_L16, 'WS', 's58' if q < 4 else 's62', (q & 3) * 1024, True)
        self.poll(loads, range(16, 48), 8)
        PS = 112
        e('v_and_b32 v8, 3, v1')
        e('v_lshlrev_b32 v8, 2, v8')
        e('v_lshrrev_b32 v9, 2, v1')
        e('v_and_b32 v9, 3, v9')
        e('v_or_b32 v8, v8, v9')
        e('v_lshrrev_b32 v9, 4, v1')
        e('v_xor_b32 v8, v8, v9')
        e('v_lshlrev_b32 v8, 4, v8')
        e('v_and_b32 v9, 15, v1')
        e('v_lshlrev_b32 v9, 10, v9')
        e('v_or_b32 v8, v8, v9')
        e('s_lshl_b32 s58, %s, 8' % S_W)
        e('s_or_b32 s58, s58, %d' % L_CKV)
        e('v_or_b32 v8, s58, v8')
        for q in range(4):
            e('v_xor_b32 v%d, %d, v8' % (ADR + q, q << 6))
        e('s_barrier')
        e('v_mov_b32 v9, 0')
        e('ds_read_b32 v8, v9 offset:%d' % L_MD)
        e('s_waitcnt lgkmcnt(0)')
        e('v_readfirstlane_b32 %s, v8' % S_MODE)
        self.ts('p3_b1', 60)

        def issue(kt):
            for u in range(4):
                r0 = CF + 16 * (kt & 1) + 4 * u
                e('ds_read_b128 v[%d:%d], v%d offset:%d' % (r0, r0 + 3, ADR + u, kt * 16384))
        issue(0)
        e('v_add_u32 v9, s59, v3')
        for kt in range(4):
            if kt < 3:
                issue(kt + 1)
                e('s_waitcnt lgkmcnt(%d)' % (4 if kt < 2 else 6))
            else:
                e('s_waitcnt lgkmcnt(2)')
            for u in range(4):
                for ht in range(2):
                    d = PS + 8 * kt + 4 * ht
                    c = '0' if u == 0 else 'v[%d:%d]' % (d, d + 3)
                    r0 = CF + 16 * (kt & 1) + 4 * u
                    e('v_mfma_f32_16x16x32_bf16 v[%d:%d], v[%d:%d], v[%d:%d], %s' % (
                        d, d + 3, r0, r0 + 3, 16 + 8 * u + 4 * ht, 19 + 8 * u + 4 * ht, c))
            if kt > 0:
                for ht in range(2):
                    d = PS + 8 * (kt - 1) + 4 * ht
                    e('ds_write_b128 v9, v[%d:%d] offset:%d' % (d, d + 3, L_SX + (2 * (kt - 1) + ht) * 1024))
        for ht in range(2):
            d = PS + 8 * 3 + 4 * ht
            e('ds_write_b128 v9, v[%d:%d] offset:%d' % (d, d + 3, L_SX + (6 + ht) * 1024))
        e('s_lshl_b32 s58, %s, 11' % S_W)
        e('v_add_u32 v9, s58, v3')
        e('s_waitcnt lgkmcnt(0)')
        e('s_barrier')
        for src in range(4):
            for ht in range(2):
                r0 = 16 + 8 * src + 4 * ht
                e('ds_read_b128 v[%d:%d], v9 offset:%d' % (r0, r0 + 3, L_SX + src * 8192 + ht * 1024))
        e('s_waitcnt lgkmcnt(0)')
        for k in range(8):
            e('v_add_f32 v%d, v%d, v%d' % (16 + k, 16 + k, 24 + k))
            e('v_add_f32 v%d, v%d, v%d' % (32 + k, 32 + k, 40 + k))
        for k in range(8):
            e('v_add_f32 v%d, v%d, v%d' % (AC + k, 16 + k, 32 + k))
        self.ts('p3_S', 60)
        e('v_and_b32 v8, 15, v1')
        e('v_lshlrev_b32 v8, 4, v8')
        e('s_lshl_b32 s58, %s, 2' % S_W)
        e('v_add_u32 v9, s58, v8')
        for ht in range(2):
            e('v_max3_f32 v%d, v%d, v%d, v%d' % (10 + ht, AC + 4 * ht, AC + 4 * ht + 1, AC + 4 * ht + 2))
        for ht in range(2):
            e('v_max_f32 v%d, v%d, v%d' % (10 + ht, 10 + ht, AC + 4 * ht + 3))
        for ht in range(2):
            self.xswap('v_max_f32', 10 + ht, 12 + ht, 16)
        for ht in range(2):
            self.xswap('v_max_f32', 10 + ht, 12 + ht, 32)
        for ht in range(2):
            e('ds_write_b32 v9, v%d offset:%d' % (10 + ht, L_MX + 256 * ht))
        e('s_waitcnt lgkmcnt(0)')
        e('s_barrier')
        self.ts('p3_b2', 60)
        for ht in range(2):
            e('ds_read_b128 v[%d:%d], v8 offset:%d' % (16 + 4 * ht, 19 + 4 * ht, L_MX + 256 * ht))
        e('v_and_b32 v14, 15, v1')
        e('v_mul_u32_u24 v14, 144, v14')
        e('v_lshrrev_b32 v15, 4, v1')
        e('v_lshlrev_b32 v15, 3, v15')
        e('v_add_u32 v14, v14, v15')
        e('s_lshl_b32 s58, %s, 5' % S_W)
        e('v_add_u32 v14, s58, v14')
        e('s_waitcnt lgkmcnt(0)')
        for ht in range(2):
            e('v_max3_f32 v%d, v%d, v%d, v%d' % (10 + ht, 16 + 4 * ht, 17 + 4 * ht, 18 + 4 * ht))
        for ht in range(2):
            e('v_max_f32 v%d, v%d, v%d' % (10 + ht, 10 + ht, 19 + 4 * ht))
        for ht in range(2):
            for i in range(4):
                e('v_sub_f32 v%d, v%d, v%d' % (AC + 4 * ht + i, AC + 4 * ht + i, 10 + ht))
        for k in range(8):
            e('v_exp_f32 v%d, v%d' % (AC + k, AC + k))
        for ht in range(2):
            e('v_cvt_pk_bf16_f32 v%d, v%d, v%d' % (16 + 2 * ht, AC + 4 * ht, AC + 4 * ht + 1))
            e('v_cvt_pk_bf16_f32 v%d, v%d, v%d' % (17 + 2 * ht, AC + 4 * ht + 2, AC + 4 * ht + 3))
        for ht in range(2):
            e('ds_write_b64 v14, v[%d:%d] offset:%d' % (16 + 2 * ht, 17 + 2 * ht, L_PL + 16 * 144 * ht))
        for ht in range(2):
            e('v_add_f32 v%d, v%d, v%d' % (10 + ht, AC + 4 * ht, AC + 4 * ht + 1))
            e('v_add_f32 v%d, v%d, v%d' % (12 + ht, AC + 4 * ht + 2, AC + 4 * ht + 3))
        for ht in range(2):
            e('v_add_f32 v%d, v%d, v%d' % (10 + ht, 10 + ht, 12 + ht))
        for ht in range(2):
            self.xswap('v_add_f32', 10 + ht, 12 + ht, 16)
        for ht in range(2):
            self.xswap('v_add_f32', 10 + ht, 12 + ht, 32)
        for ht in range(2):
            e('ds_write_b32 v9, v%d offset:%d' % (10 + ht, L_LW + 256 * ht))
        e('v_and_b32 v9, 15, v1')
        e('v_lshrrev_b32 v9, 2, v9')
        e('v_lshrrev_b32 v11, 5, v1')
        e('v_lshlrev_b32 v8, 3, v11')
        e('v_add_u32 v8, v8, v9')
        e('v_lshlrev_b32 v8, 10, v8')
        e('v_lshlrev_b32 v9, 6, v9')
        e('v_or_b32 v8, v8, v9')
        e('v_lshrrev_b32 v9, 4, v1')
        e('v_xor_b32 v9, v9, v11')
        e('v_and_b32 v9, 1, v9')
        e('v_lshlrev_b32 v9, 5, v9')
        e('v_or_b32 v8, v8, v9')
        e('v_and_b32 v9, 2, v1')
        e('v_lshlrev_b32 v9, 3, v9')
        e('v_or_b32 v8, v8, v9')
        e('v_and_b32 v9, 1, v1')
        e('v_lshlrev_b32 v9, 3, v9')
        e('v_or_b32 v8, v8, v9')
        e('s_lshl_b32 s58, %s, 8' % S_W)
        e('s_or_b32 s58, s58, %d' % L_CKV)
        e('v_or_b32 v8, s58, v8')
        for nt in range(4):
            for j in range(2):
                e('v_xor_b32 v%d, 0x%x, v8' % (ADR + 2 * nt + j, (nt << 6) | (j * 0x1010)))
        e('v_and_b32 v9, 31, v1')
        e('v_mul_u32_u24 v9, 144, v9')
        e('v_lshlrev_b32 v11, 4, v11')
        e('v_add_u32 v9, v9, v11')
        e('s_waitcnt lgkmcnt(0)')
        e('s_barrier')
        self.ts('p3_b3', 60)
        for ks in range(4):
            e('ds_read_b128 v[%d:%d], v9 offset:%d' % (PF + 4 * ks, PF + 4 * ks + 3, L_PL + 32 * ks))
        e('v_and_b32 v8, 31, v1')
        e('v_lshlrev_b32 v8, 4, v8')
        e('ds_read_b128 v[48:51], v8 offset:%d' % L_MX)
        e('ds_read_b128 v[52:55], v8 offset:%d' % L_LW)
        e('s_lshl_b32 s58, %s, 15' % S_R)
        e('s_lshl_b32 s59, %s, 10' % S_W)
        e('s_add_u32 s58, s58, s59')
        e('s_add_u32 s58, s58, %d' % OP)
        e('s_add_u32 s59, s58, 8192')
        e('s_add_u32 s62, s58, 16384')
        e('s_add_u32 s63, s58, 24576')
        e('v_lshrrev_b32 v8, 5, v1')
        e('v_lshlrev_b32 v8, 12, v8')
        e('v_and_b32 v9, 31, v1')
        e('v_lshlrev_b32 v9, 3, v9')
        e('v_add_u32 v8, v8, v9')
        so = ['s58', 's59', 's62', 's63']

        def tr(nt):
            for kstep in range(4):
                for j in range(2):
                    r0 = CF + 16 * (nt & 1) + 4 * kstep + 2 * j
                    e('ds_read_b64_tr_b16 v[%d:%d], v%d offset:%d' % (r0, r0 + 1, ADR + 2 * nt + j, kstep * 16384))

        def packstore(nt):
            for g in range(4):
                a = AO + 16 * nt + 4 * g
                d = 32 + 8 * (nt & 1) + 2 * g
                e('v_cvt_pk_bf16_f32 v%d, v%d, v%d' % (d, a, a + 1))
                e('v_cvt_pk_bf16_f32 v%d, v%d, v%d' % (d + 1, a + 2, a + 3))

            def f(sc):
                for g in range(4):
                    self.st(32 + 8 * (nt & 1) + 2 * g, 2, 8, 'WS', so[g], nt * 256, sc)
            self.local_stores(f, False)
        tr(0)
        for nt in range(4):
            if nt < 3:
                tr(nt + 1)
                e('s_waitcnt lgkmcnt(8)')
            else:
                e('s_waitcnt lgkmcnt(0)')
            for kstep in range(4):
                c = '0' if kstep == 0 else 'v[%d:%d]' % (AO + 16 * nt, AO + 16 * nt + 15)
                e('v_mfma_f32_32x32x16_bf16 v[%d:%d], v[%d:%d], v[%d:%d], %s' % (
                    AO + 16 * nt, AO + 16 * nt + 15, PF + 4 * kstep, PF + 4 * kstep + 3,
                    CF + 16 * (nt & 1) + 4 * kstep, CF + 16 * (nt & 1) + 4 * kstep + 3, c))
                if kstep == 1 and nt > 0:
                    packstore(nt - 1)
        packstore(3)
        e('s_waitcnt lgkmcnt(0)')
        e('v_max3_f32 v10, v48, v49, v50')
        e('v_max_f32 v10, v10, v51')
        e('v_add_f32 v12, v52, v53')
        e('v_add_f32 v13, v54, v55')
        e('v_add_f32 v12, v12, v13')
        e('v_cmp_gt_u32 vcc, 32, v1')
        e('v_cndmask_b32 v13, v12, v10, vcc')
        self.clamp([13])
        self.ts('p3_st', 60)
        e('s_waitcnt vmcnt(0)')
        self.ts('p3_ack', 60)
        e('s_barrier')
        self.pub_st(13, False, S_LB)

    def p3b(self):
        e = self.emit
        e('s_lshr_b32 s58, %s, 2' % S_X)
        e('s_lshl_b32 s58, s58, 3')
        e('s_lshr_b32 s59, %s, 2' % S_J)
        e('s_add_u32 s58, s58, s59')
        e('s_lshl_b32 s58, s58, 12')
        e('s_and_b32 s62, %s, 3' % S_X)
        e('s_lshl_b32 s62, s62, 10')
        e('s_add_u32 s58, s58, s62')
        e('s_add_u32 s58, s58, %s' % S_LB)
        e('s_add_u32 s58, s58, %d' % ST)
        e('v_and_b32 v9, 31, v1')
        e('v_lshlrev_b32 v9, 5, v9')
        e('s_lshl_b32 s62, %s, 5' % S_X)
        e('s_lshl_b32 s63, %s, 3' % S_W)
        e('s_add_u32 s62, s62, s63')
        e('s_lshl_b32 s62, s62, 15')
        e('s_lshl_b32 s59, s59, 12')
        e('s_add_u32 s62, s62, s59')
        e('s_and_b32 s59, %s, 3' % S_J)
        e('s_lshl_b32 s59, s59, 10')
        e('s_add_u32 s62, s62, s59')
        e('s_add_u32 s64, s62, %d' % OP)
        for q in range(1, 8):
            e('s_add_u32 s%d, s64, %d' % (64 + q, 32768 * q))

        def loads():
            self.ld(16, 4, 9, 'WS', 's58', 0, True)
            self.ld(20, 4, 9, 'WS', 's58', 16, True)
        self.poll(loads, range(16, 24), 8)
        for q in range(8):
            self.ld(24 + 4 * q, 4, V_L16, 'WS', 's%d' % (64 + q), 0, True)
        for h in range(4):
            e('v_mov_b32 v%d, v%d' % (56 + h, 16 + h))
        self.dpp_reduce('v_max_f32', [56, 57, 58, 59])
        for h in range(4):
            e('v_readlane_b32 s%d, v%d, 63' % (72 + h, 56 + h))
        for h in range(4):
            e('v_subrev_f32 v%d, s%d, v%d' % (56 + h, 72 + h, 16 + h))
        for h in range(4):
            e('v_exp_f32 v%d, v%d' % (56 + h, 56 + h))
        for h in range(4):
            e('v_mul_f32 v%d, v%d, v%d' % (60 + h, 56 + h, 20 + h))
        self.dpp_reduce('v_add_f32', [60, 61, 62, 63], full=False)
        for h in range(4):
            e('v_readlane_b32 s%d, v%d, 31' % (76 + h, 60 + h))
        for k in range(8):
            e('v_mov_b32 v%d, 0' % (64 + k))
        e('s_lshl_b32 s58, %s, 3' % S_W)
        for q in range(8):
            e('s_waitcnt vmcnt(%d)' % (7 - q))
            for h in range(4):
                e('v_readlane_b32 s%d, v%d, s58' % (80 + h, 56 + h))
            e('s_add_u32 s58, s58, 1')
            for c in range(2):
                for hp in range(2):
                    src = 24 + 4 * q + 2 * c + hp
                    self.unpack(10, 11, src)
                    e('v_fma_f32 v%d, s%d, v10, v%d' % (64 + 4 * c + 2 * hp, 80 + 2 * hp, 64 + 4 * c + 2 * hp))
                    e('v_fma_f32 v%d, s%d, v11, v%d' % (64 + 4 * c + 2 * hp + 1, 80 + 2 * hp + 1, 64 + 4 * c + 2 * hp + 1))
        e('v_lshlrev_b32 v8, 5, v0')
        e('ds_write_b128 v8, v[64:67] offset:%d' % L_AC)
        e('ds_write_b128 v8, v[68:71] offset:%d' % (L_AC + 16))
        e('s_waitcnt lgkmcnt(0)')
        e('s_barrier')
        e('v_lshlrev_b32 v8, 3, v0')
        for w in range(4):
            e('ds_read_b64 v[%d:%d], v8 offset:%d' % (16 + 2 * w, 17 + 2 * w, L_AC + 2048 * w))
        e('s_waitcnt lgkmcnt(0)')
        for k in range(2):
            e('v_add_f32 v%d, v%d, v%d' % (16 + k, 16 + k, 18 + k))
            e('v_add_f32 v%d, v%d, v%d' % (20 + k, 20 + k, 22 + k))
        for k in range(2):
            e('v_add_f32 v%d, v%d, v%d' % (16 + k, 16 + k, 20 + k))
        self.clamp([16, 17])
        self.pub_xo(16, S_LB)
        for k in range(8):
            e('v_mov_b32 v%d, s%d' % (24 + k, 72 + k))
        self.clamp(range(24, 32))
        self.pub_xs(24, S_LB)

    def p4(self):
        e = self.emit
        e('s_lshl_b32 s58, %s, 13' % S_X)
        e('s_lshl_b32 s59, %s, 8' % S_J)
        e('s_add_u32 s58, s58, s59')
        e('s_lshl_b32 s59, %s, 2' % S_W)
        e('s_add_u32 s58, s58, s59')
        e('s_add_u32 s58, s58, %s' % S_LB)
        e('s_add_u32 s58, s58, %d' % XO)
        e('s_add_u32 s59, s58, %d' % (4 * 8 * 8192))
        e('v_lshrrev_b32 v9, 4, v1')
        e('v_lshlrev_b32 v10, 16, v9')
        e('v_and_b32 v11, 15, v1')
        e('v_lshlrev_b32 v11, 4, v11')
        e('v_add_u32 v10, v10, v11')
        e('s_lshl_b32 s62, %s, 5' % S_X)
        e('s_lshl_b32 s63, %s, 2' % S_W)
        e('s_add_u32 s62, s62, s63')
        e('s_add_u32 s62, s62, %s' % S_LB)
        e('s_add_u32 s62, s62, %d' % XS)
        e('v_lshlrev_b32 v9, 8, v9')

        def loads():
            self.ld(16, 1, 10, 'WS', 's58', 0, True)
            self.ld(17, 1, 10, 'WS', 's59', 0, True)
            self.ld(18, 1, 9, 'WS', 's62', 0, True)
            self.ld(19, 1, 9, 'WS', 's62', 1024, True)
            self.ld(20, 1, 9, 'WS', 's62', 16, True)
            self.ld(21, 1, 9, 'WS', 's62', 1040, True)
        self.poll(loads, range(16, 22), 8)
        for b in range(2):
            e('v_mov_b32 v%d, v%d' % (22 + b, 18 + b))
        for b in range(2):
            self.xswap('v_max_f32', 22 + b, 24 + b, 16)
        for b in range(2):
            self.xswap('v_max_f32', 22 + b, 24 + b, 32)
        for b in range(2):
            e('v_sub_f32 v%d, v%d, v%d' % (18 + b, 18 + b, 22 + b))
        for b in range(2):
            e('v_exp_f32 v%d, v%d' % (18 + b, 18 + b))
        for b in range(2):
            e('v_mul_f32 v%d, v%d, v%d' % (16 + b, 16 + b, 18 + b))
            e('v_mul_f32 v%d, v%d, v%d' % (20 + b, 20 + b, 18 + b))
        for r in (16, 17, 20, 21):
            self.xswap('v_add_f32', r, 24, 16)
        for r in (16, 17, 20, 21):
            self.xswap('v_add_f32', r, 24, 32)
        for b in range(2):
            e('v_rcp_f32 v%d, v%d' % (22 + b, 20 + b))
        for b in range(2):
            e('v_mul_f32 v%d, v%d, v%d' % (16 + b, 16 + b, 22 + b))
        for b in range(2):
            for c in range(16):
                e('v_readlane_b32 s%d, v%d, %d' % (64 + 16 * b + c, 16 + b, c))
        for k in range(4):
            e('v_mov_b32 v%d, 0' % (24 + k))
        for c in range(16):
            e('v_accvgpr_read_b32 v28, a%d' % (A_WUV + c))
            self.unpack(29, 30, 28)
            for b in range(2):
                e('v_fma_f32 v%d, s%d, v29, v%d' % (24 + 2 * b, 64 + 16 * b + c, 24 + 2 * b))
                e('v_fma_f32 v%d, s%d, v30, v%d' % (25 + 2 * b, 64 + 16 * b + c, 25 + 2 * b))
        self.clamp(range(24, 28))
        self.pub_cp(24, 26, False, S_LB)

    def p5(self):
        e = self.emit
        e('s_lshl_b32 s58, %s, 6' % S_R)
        e('s_lshl_b32 s59, %s, 4' % S_W)
        e('s_add_u32 s58, s58, s59')
        e('s_add_u32 s58, s58, %s' % S_LB)
        e('s_add_u32 s58, s58, %d' % CP)
        e('v_and_b32 v9, 31, v1')
        e('v_lshlrev_b32 v9, 15, v9')
        e('v_lshrrev_b32 v10, 5, v1')
        e('v_lshlrev_b32 v10, 14, v10')
        e('v_add_u32 v9, v9, v10')
        self.poll(lambda: self.ld(16, 4, 9, 'WS', 's58', 0, True), range(16, 20), 8)
        self.dpp_reduce('v_add_f32', [16, 17, 18, 19], full=False)
        for k in range(4):
            self.bf16r(16 + k, 16 + k)
        e('v_lshrrev_b32 v9, 5, v1')
        e('v_lshlrev_b32 v9, 6, v9')
        e('s_lshl_b32 s58, %s, 4' % S_W)
        e('v_add_u32 v9, s58, v9')
        e('s_mov_b32 s60, 0x80000000')
        e('s_mov_b32 s61, 0x80000000')
        e('s_mov_b64 exec, s[60:61]')
        e('ds_write_b128 v9, v[16:19] offset:%d' % L_CT)
        e('s_mov_b64 exec, -1')
        e('s_waitcnt lgkmcnt(0)')
        e('s_barrier')
        e('v_mov_b32 v9, 0')
        for q in range(8):
            e('ds_read_b128 v[%d:%d], v9 offset:%d' % (32 + 4 * q, 35 + 4 * q, L_CT + 16 * q))
        for k in range(4):
            e('v_mov_b32 v%d, 0' % (24 + k))
        e('s_waitcnt lgkmcnt(0)')
        for d in range(16):
            e('v_accvgpr_read_b32 v28, a%d' % (A_WO + d))
            self.unpack(29, 30, 28)
            for b in range(2):
                e('v_fmac_f32 v%d, v%d, v29' % (24 + 2 * b, 32 + 16 * b + d))
                e('v_fmac_f32 v%d, v%d, v30' % (25 + 2 * b, 32 + 16 * b + d))
        self.clamp(range(24, 28))
        self.pub_po(PO, 24, 26, False, S_LB)

    def p6(self, src, dst, npart, lds):
        e = self.emit
        e('s_lshl_b32 s58, %s, 5' % S_X)
        e('s_lshl_b32 s59, %s, 3' % S_W)
        e('s_add_u32 s58, s58, s59')
        e('s_lshl_b32 s58, s58, 12')
        e('s_lshl_b32 s59, %s, 7' % S_J)
        e('s_add_u32 s58, s58, s59')
        e('s_add_u32 s58, s58, %s' % S_LB)
        e('s_add_u32 s58, s58, %d' % src)
        e('v_lshrrev_b32 v9, 3, v1')
        e('v_lshlrev_b32 v9, 12, v9')
        e('v_and_b32 v10, 7, v1')
        e('v_lshlrev_b32 v10, 4, v10')
        e('v_add_u32 v9, v9, v10')
        if npart < 32:
            for k in range(4):
                e('v_mov_b32 v%d, 0' % (16 + k))
            e('v_lshrrev_b32 v10, 3, v0')
            e('v_cmp_gt_u32 s[60:61], %d, v10' % npart)

        def loads():
            if npart < 32:
                e('s_mov_b64 exec, s[60:61]')
            self.ld(16, 4, 9, 'WS', 's58', 0, True)
            if npart < 32:
                e('s_mov_b64 exec, -1')
        self.poll(loads, range(16, 20), 8)
        for k in range(4):
            e('v_add_f32_dpp v%d, v%d, v%d row_ror:8 row_mask:0xf bank_mask:0xf' % (16 + k, 16 + k, 16 + k))
        for k in range(4):
            self.xswap('v_add_f32', 16 + k, 20 + k, 16)
        for k in range(4):
            self.xswap('v_add_f32', 16 + k, 20 + k, 32)
        e('s_lshl_b32 s58, %s, 7' % S_W)
        e('v_and_b32 v9, 7, v1')
        e('v_lshlrev_b32 v9, 4, v9')
        e('v_add_u32 v10, s58, v9')
        e('ds_write_b128 v10, v[16:19] offset:%d' % lds)
        e('s_waitcnt lgkmcnt(0)')
        e('s_barrier')
        for w in range(4):
            e('ds_read_b128 v[%d:%d], v9 offset:%d' % (16 + 4 * w, 19 + 4 * w, lds + 128 * w))
        e('s_waitcnt lgkmcnt(0)')
        for k in range(4):
            e('v_add_f32 v%d, v%d, v%d' % (16 + k, 16 + k, 20 + k))
            e('v_add_f32 v%d, v%d, v%d' % (24 + k, 24 + k, 28 + k))
        for k in range(4):
            e('v_add_f32 v%d, v%d, v%d' % (16 + k, 16 + k, 24 + k))
        self.clamp(range(16, 20))
        self.pub_xp(dst, 16, S_LB)

    def p7(self):
        e = self.emit
        skip = self.label('LS')
        e('s_cmp_ge_u32 %s, 28' % S_J)
        e('s_cbranch_scc1 %s' % skip)
        e('s_lshl_b32 s58, %s, 8' % S_W)
        e('v_add_u32 v8, s58, v2')
        for rr in range(2):
            for b in range(2):
                e('ds_read_b32 v%d, v8 offset:%d' % (16 + 2 * rr + b, L_XN + b * 2048 + rr * 1024))
        for k in range(32):
            e('v_mov_b32 v%d, 0' % (32 + k))
        e('s_waitcnt lgkmcnt(0)')
        for mat, ab in enumerate((A_W1, A_W3)):
            for rr in range(2):
                for d in range(4):
                    e('v_accvgpr_read_b32 v24, a%d' % (ab + 4 * rr + d))
                    self.unpack(25, 26, 24)
                    for b in range(2):
                        a = 32 + 16 * mat + 8 * b + 2 * d
                        e('v_fmac_f32 v%d, v%d, v25' % (a, 16 + 2 * rr + b))
                        e('v_fmac_f32 v%d, v%d, v26' % (a + 1, 16 + 2 * rr + b))
        for k in range(16):
            e('v_permlane32_swap_b32 v%d, v%d' % (32 + k, 48 + k))
            e('v_add_f32 v%d, v%d, v%d' % (32 + k, 32 + k, 48 + k))
        for k in range(8):
            e('v_permlane16_swap_b32 v%d, v%d' % (32 + k, 40 + k))
            e('v_add_f32 v%d, v%d, v%d' % (32 + k, 32 + k, 40 + k))
        self.row_reduce('v_add_f32', list(range(32, 40)))
        e('v_lshrrev_b32 v9, 4, v1')
        e('v_lshlrev_b32 v9, 5, v9')
        e('s_lshl_b32 s58, %s, 7' % S_W)
        e('v_add_u32 v9, s58, v9')
        e('s_mov_b32 s60, 0x80008000')
        e('s_mov_b32 s61, 0x80008000')
        e('s_mov_b64 exec, s[60:61]')
        e('ds_write_b128 v9, v[32:35] offset:%d' % L_FR)
        e('ds_write_b128 v9, v[36:39] offset:%d' % (L_FR + 16))
        e('s_mov_b64 exec, -1')
        e('s_waitcnt lgkmcnt(0)')
        e('s_barrier')
        e('v_and_b32 v9, 15, v1')
        e('v_lshlrev_b32 v9, 2, v9')
        for w in range(4):
            e('ds_read_b32 v%d, v9 offset:%d' % (16 + w, L_FR + 128 * w))
            e('ds_read_b32 v%d, v9 offset:%d' % (20 + w, L_FR + 128 * w + 64))
        e('s_waitcnt lgkmcnt(0)')
        e('v_add_f32 v16, v16, v17')
        e('v_add_f32 v18, v18, v19')
        e('v_add_f32 v20, v20, v21')
        e('v_add_f32 v22, v22, v23')
        e('v_add_f32 v16, v16, v18')
        e('v_add_f32 v20, v20, v22')
        self.bf16r(16, 16)
        self.bf16r(20, 20)
        e('v_mul_f32 v17, %s, v16' % f32hex(-1.4426950408889634))
        e('v_exp_f32 v17, v17')
        e('v_add_f32 v17, 1.0, v17')
        e('v_rcp_f32 v17, v17')
        e('v_mul_f32 v17, v17, v16')
        self.bf16r(17, 17)
        e('v_mul_f32 v17, v17, v20')
        self.bf16r(17, 17)
        for k in range(16):
            e('v_readlane_b32 s%d, v17, %d' % (64 + k, k))
        for k in range(4):
            e('v_mov_b32 v%d, 0' % (24 + k))
        for f in range(8):
            e('v_accvgpr_read_b32 v28, a%d' % (A_W2 + f))
            self.unpack(29, 30, 28)
            for b in range(2):
                e('v_fma_f32 v%d, s%d, v29, v%d' % (24 + 2 * b, 64 + 8 * b + f, 24 + 2 * b))
                e('v_fma_f32 v%d, s%d, v30, v%d' % (25 + 2 * b, 64 + 8 * b + f, 25 + 2 * b))
        self.clamp(range(24, 28))
        self.pub_po(PO2, 24, 26, False, S_LB)
        done = self.label('LS')
        e('s_branch %s' % done)
        self.place(skip)
        e('s_barrier')
        self.nbar -= 1
        self.place(done)

    def unpack_x0(self):
        self.unpack(4, 5, 6)
        self.unpack(6, 7, 7)

    def a_phases(self, L):
        self.layernorm()
        self.p1()
        self.pub_qp(16, False, S_LB)
        self.emit('s_barrier')
        self.phase_end()
        self.emit('s_barrier')
        self.p3(L == 0)
        self.phase_end()
        self.p3b()
        self.emit('s_barrier')
        self.phase_end()

    def b_phases(self, L):
        self.p4()
        self.phase_end()
        self.p5()
        self.phase_end()
        self.p6(PO, XP, 32, L_R6)
        self.emit('s_barrier')
        self.phase_end()

    def c_phases(self, L):
        self.gather_x(XP, S_LB)
        self.layernorm(L_XN2, L_XL2)
        self.p7()
        self.phase_end()
        self.p6(PO2, XP2, 28, L_R8)
        self.phase_end()

    def count_bar(self, fn):
        g = G(None, False)
        fn(g)
        return g.nbar

    def if_l0(self, fn):
        skip = self.label('LI')
        self.emit('s_cmp_lg_u32 s97, 0')
        self.emit('s_cbranch_scc1 %s' % skip)
        fn()
        self.place(skip)

    def build(self):
        e = self.emit
        nA = self.count_bar(lambda g: g.a_phases(1))
        nB = self.count_bar(lambda g: g.b_phases(1))
        nC = self.count_bar(lambda g: g.c_phases(1))
        self.prologue()
        self.prologueA()
        self.unpack_x0()
        self.place('L_ALOOP')
        self.a_phases(0)

        def ffn():
            self.bulk2(4)
            self.bulk2(5)
        self.if_l0(ffn)
        self.idle_barriers(nB)
        self.c_phases(0)
        e('s_and_b32 s58, s97, %s' % S_R)
        e('s_cmp_lg_u32 %s, 0' % S_R)
        e('s_cselect_b32 s58, s97, 0')
        e('s_cmp_lg_u32 s58, 0')
        e('s_cbranch_scc1 L_END')
        self.gather_x(XP2, S_LB)
        e('s_cmp_lg_u32 s97, 0')
        e('s_cbranch_scc1 L_FINAL')
        e('s_mov_b32 %s, 0x%x' % (S_LB, LAYER))
        e('s_mov_b32 s97, 1')
        e('s_branch L_ALOOP')
        self.place('L_FINAL')
        e('v_cvt_pk_bf16_f32 v16, v4, v5')
        e('v_cvt_pk_bf16_f32 v17, v6, v7')
        e('v_lshlrev_b32 v8, 3, v0')
        self.st(16, 2, 8, 'OUT')
        e('s_branch L_END')
        self.place('L_GROUPB')
        self.hist = []
        self.prologueB()
        self.place('L_BLOOP')
        self.idle_barriers(4)
        self.if_l0(self.flagwait)
        self.idle_barriers(1)
        self.p2()
        self.phase_end()
        self.p2b()
        self.idle_barriers(1)
        for part in range(4):
            self.idle_barriers(1)
            self.if_l0(lambda: self.bulk2(part))
        self.idle_barriers(nA - 6 - 4)
        self.b_phases(0)
        e('s_cmp_lg_u32 s97, 0')
        e('s_cbranch_scc1 L_END')
        for i in range(16, 20):
            e('v_mov_b32 v%d, -1' % i)
        e('s_mov_b32 %s, 0x%x' % (S_LB, LAYER))
        self.clears(S_LB, True, True)
        e('s_waitcnt vmcnt(0)')
        self.idle_barriers(nC)
        e('s_mov_b32 s97, 1')
        e('s_branch L_BLOOP')
        self.place('L_END')
        e('s_endpgm')


def main():
    stop = None
    outp = 'interleave_layers__compressed_kv_cla__glu_gated_swiglu__decode.s'
    for a in sys.argv[1:]:
        if a.startswith('stop='):
            stop = int(a[5:])
        if a.startswith('out='):
            outp = a[4:]
    prof = any(a == 'prof' for a in sys.argv[1:])
    g = G(stop, prof)
    g.build()
    if prof:
        open(outp + '.ts', 'w').write('\n'.join(g.tsnames))
    ref = open('interleave_layers__compressed_kv_cla__glu_gated_swiglu__decode.s.ref').read()
    head = []
    for l in ref.split('\n'):
        if l.startswith('; @launch'):
            break
        head.append(l)
    s = '\n'.join(head) + '\n'
    s += '; @launch grid=(256,1,1) block=(512,1,1) lds=%d\n' % LDS_BYTES
    s += '.amdgcn_target "amdgcn-amd-amdhsa--gfx950"\n.text\n.globl %s\n.p2align 8\n.type %s,@function\n%s:\n' % (KNAME, KNAME, KNAME)
    s += g.text()
    s += '''.section .rodata,"a"
.p2align 6
.amdhsa_kernel %s
  .amdhsa_next_free_vgpr 256
  .amdhsa_next_free_sgpr 102
  .amdhsa_accum_offset 176
  .amdhsa_group_segment_fixed_size 0
  .amdhsa_kernarg_size 104
  .amdhsa_user_sgpr_count 2
  .amdhsa_user_sgpr_kernarg_segment_ptr 1
  .amdhsa_system_sgpr_workgroup_id_x 1
.end_amdhsa_kernel
''' % KNAME
    open(outp, 'w').write(s)


if __name__ == '__main__':
    main()
```

```python
import sys, os
sys.path.insert(0, os.path.dirname(os.path.abspath(__file__)))
from asmlib import Asm

KNAME = 'interleave_layers__compressed_kv_cla__glu_gated_swiglu__decode_kernel'

QP = 0x000000
QA = 0x020000
ST = 0x030000
XS = 0x040000
XO = 0x050000
XP = 0x0D0000
XP2 = 0x0E0000
CP = 0x100000
PO = 0x200000
PO2 = 0x300000
OP = 0x400000
QL = 0xC00000
XG = 0xC80000
XG2 = 0xC90000
LAYER = 0x1000000

L_CKV = 65536
L_XN = 0
L_AC = 0
L_XL = 16384
L_SX = 20480
L_RQ = 53248
L_QS = 55296
L_CT = 57344
L_R6 = 57600
L_FR = 58112
L_R8 = 58624
L_XN2 = L_XN
L_XL2 = L_XL
L_MD = 59136
L_MX = 59392
L_LW = 59904
L_PL = 60416
LDS_BYTES = 131072

S_WG, S_R, S_W, S_LB, S_BUD, S_MODE = 's2', 's3', 's4', 's5', 's6', 's7'
SRD = dict(X=8, CKV=12, WQ=16, WUK=20, WUV=24, WO=28, W1=32, W3=36, W2=40, OUT=44, DBG=48, WS=52)
S_X, S_J = 's56', 's57'


def srd(n):
    b = SRD[n]
    return 's[%d:%d]' % (b, b + 3)


def vr(a, n=1):
    return 'v%d' % a if n == 1 else 'v[%d:%d]' % (a, a + n - 1)


def ar(a, n=1):
    return 'a%d' % a if n == 1 else 'a[%d:%d]' % (a, a + n - 1)


A_WQ = 0
A_WUK = 56
A_WUV, A_WO = 0, 16
A_W1, A_W3, A_W2 = 16, 24, 32
V_LANE, V_L4, V_L16 = 1, 2, 3
V_XO = 4

SCALE = 0.08838834764831845 * 1.4426950408889634
import struct


def f32hex(x):
    return '0x%08x' % struct.unpack('<I', struct.pack('<f', x))[0]


NT = set(os.environ.get('NT', 'CKV,WQ,WUV,WO,W2').split(','))
PRE = int(os.environ.get('PRE', '3'))
SKIP = set(os.environ.get('SKIP', '').split(','))
WNAME = {1: 'dword', 2: 'dwordx2', 4: 'dwordx4'}


class G(Asm):
    def __init__(self, stop=None, prof=False):
        super().__init__()
        self.stop = stop
        self.phase_no = 0
        self.prof = prof
        self.tsnames = []
        self.nbar = 0

    def emit(self, text):
        if text.strip() == 's_barrier':
            self.nbar += 1
        super().emit(text)

    __call__ = emit

    def idle_barriers(self, n):
        for _ in range(n):
            self.emit('s_barrier')

    def ld(self, dst, n, vaddr, buf, soff='0', imm=0, sc1=False, acc=False):
        if buf in SKIP:
            return
        d = ar(dst, n) if acc else vr(dst, n)
        t = 'buffer_load_%s %s, %s, %s, %s offen' % (WNAME[n], d, vr(vaddr), srd(buf), soff)
        if imm:
            assert 0 <= imm < 4096
            t += ' offset:%d' % imm
        if sc1:
            t += ' sc1'
        if buf in NT:
            t += ' nt'
        self.emit(t)

    def st(self, src, n, vaddr, buf, soff='0', imm=0, sc1=False, nt=False):
        t = 'buffer_store_%s %s, %s, %s, %s offen' % (WNAME[n], vr(src, n), vr(vaddr), srd(buf), soff)
        if imm:
            assert 0 <= imm < 4096
            t += ' offset:%d' % imm
        if sc1:
            t += ' sc1'
        if nt and not sc1:
            t += ' nt'
        self.emit(t)

    def clamp(self, regs):
        for r in regs:
            self.emit('v_min_u32 v%d, -2, v%d' % (r, r))

    def local_stores(self, fn, clear=False):
        if clear:
            fn(True)
            return
        lf, le = self.label('LF'), self.label('LE')
        self.emit('s_cmp_eq_u32 %s, 1' % S_MODE)
        self.emit('s_cbranch_scc1 %s' % lf)
        fn(True)
        self.emit('s_branch %s' % le)
        self.place(lf)
        fn(False)
        self.place(le)

    def poll(self, loads, regs, tmp):
        l0, l1 = self.label('LP'), self.label('LD')
        self.place(l0)
        loads()
        self.emit('s_waitcnt vmcnt(0)')
        regs = list(regs)
        if len(regs) == 1:
            self.emit('v_mov_b32 v%d, v%d' % (tmp, regs[0]))
        elif len(regs) == 2:
            self.emit('v_max_u32 v%d, v%d, v%d' % (tmp, regs[0], regs[1]))
        else:
            self.emit('v_max3_u32 v%d, v%d, v%d, v%d' % (tmp, regs[0], regs[1], regs[2]))
            i = 3
            while i < len(regs):
                if i + 1 < len(regs):
                    self.emit('v_max3_u32 v%d, v%d, v%d, v%d' % (tmp, tmp, regs[i], regs[i + 1]))
                    i += 2
                else:
                    self.emit('v_max_u32 v%d, v%d, v%d' % (tmp, tmp, regs[i]))
                    i += 1
        self.emit('v_cmp_eq_u32 vcc, -1, v%d' % tmp)
        self.emit('s_cbranch_vccz %s' % l1)
        self.emit('s_cmp_eq_u32 %s, 0' % S_BUD)
        self.emit('s_cbranch_scc1 %s' % l1)
        self.emit('s_sub_u32 %s, %s, 1' % (S_BUD, S_BUD))
        self.emit('s_branch %s' % l0)
        self.place(l1)
        self.ts('poll')

    def dpp_reduce(self, op, regs, full=True):
        steps = ['row_shr:1', 'row_shr:2', 'row_shr:4', 'row_shr:8']
        for s in steps:
            for r in regs:
                self.emit('%s_dpp v%d, v%d, v%d %s row_mask:0xf bank_mask:0xf' % (op, r, r, r, s))
        for r in regs:
            self.emit('%s_dpp v%d, v%d, v%d row_bcast:15 row_mask:0xa bank_mask:0xf' % (op, r, r, r))
        if full:
            for r in regs:
                self.emit('%s_dpp v%d, v%d, v%d row_bcast:31 row_mask:0xc bank_mask:0xf' % (op, r, r, r))

    def row_reduce(self, op, regs):
        for s in ['row_shr:1', 'row_shr:2', 'row_shr:4', 'row_shr:8']:
            for r in regs:
                self.emit('%s_dpp v%d, v%d, v%d %s row_mask:0xf bank_mask:0xf' % (op, r, r, r, s))

    def bf16r(self, dst, src, tmp=None):
        self.emit('v_cvt_pk_bf16_f32 v%d, v%d, v%d' % (dst, src, src))
        self.emit('v_lshlrev_b32 v%d, 16, v%d' % (dst, dst))

    def unpack(self, lo, hi, src):
        self.emit('v_lshlrev_b32 v%d, 16, v%d' % (lo, src))
        self.emit('v_and_b32 v%d, 0xffff0000, v%d' % (hi, src))

    def xswap(self, op, r, t, which):
        self.emit('v_mov_b32 v%d, v%d' % (t, r))
        self.emit('v_permlane%d_swap_b32 v%d, v%d' % (which, r, t))
        self.emit('%s v%d, v%d, v%d' % (op, r, r, t))

    def ts(self, name, R=14):
        if not self.prof:
            return
        idx = len(self.tsnames)
        self.tsnames.append(name)
        skip = self.label('LT')
        self.emit('s_cmp_lg_u32 %s, 0' % S_W)
        self.emit('s_cbranch_scc1 %s' % skip)
        self.emit('s_memrealtime s[100:101]')
        self.emit('s_waitcnt lgkmcnt(0)')
        self.emit('v_mov_b32 v%d, s100' % R)
        self.emit('s_lshl_b32 s100, %s, 8' % S_R)
        self.emit('s_add_u32 s100, s100, 0x3000000')
        self.emit('v_mov_b32 v%d, 0' % (R + 1))
        self.emit('s_mov_b64 exec, 1')
        self.emit('buffer_store_dword v%d, v%d, %s, s100 offen offset:%d' % (R, R + 1, srd('WS'), idx * 4))
        self.emit('s_mov_b64 exec, -1')
        self.place(skip)

    def phase_end(self):
        self.phase_no += 1
        self.ts('end%d' % self.phase_no)
        if self.stop is not None and self.phase_no == self.stop:
            self.emit('s_branch L_END')

    def pub_qp(self, data, clear, lb):
        skip = self.label('LS')
        self.emit('s_cmp_ge_u32 %s, 2' % S_W)
        self.emit('s_cbranch_scc1 %s' % skip)
        self.emit('s_and_b32 s58, %s, 3' % S_R)
        self.emit('s_lshl_b32 s58, s58, 1')
        self.emit('s_add_u32 s58, s58, %s' % S_W)
        self.emit('s_lshl_b32 s58, s58, 14')
        self.emit('s_lshr_b32 s59, %s, 2' % S_R)
        self.emit('s_lshl_b32 s59, s59, 8')
        self.emit('s_add_u32 s58, s58, s59')
        self.emit('s_add_u32 s58, s58, %s' % lb)
        self.local_stores(lambda sc: self.st(data, 1, V_L4, 'WS', 's58', QP, sc), clear)
        self.place(skip)

    def pub_qa(self, data, clear, lb):
        self.emit('s_and_b32 s58, %s, 7' % S_R)
        self.emit('s_lshl_b32 s58, s58, 1')
        self.emit('s_lshr_b32 s59, %s, 1' % S_W)
        self.emit('s_add_u32 s58, s58, s59')
        self.emit('s_lshl_b32 s58, s58, 11')
        self.emit('s_lshr_b32 s59, %s, 7' % S_R)
        self.emit('s_lshl_b32 s59, s59, 10')
        self.emit('s_add_u32 s58, s58, s59')
        self.emit('s_and_b32 s59, %s, 1' % S_W)
        self.emit('s_lshl_b32 s59, s59, 9')
        self.emit('s_add_u32 s58, s58, s59')
        self.emit('s_lshr_b32 s59, %s, 3' % S_R)
        self.emit('s_and_b32 s59, s59, 15')
        self.emit('s_lshl_b32 s59, s59, 4')
        self.emit('s_add_u32 s58, s58, s59')
        self.emit('s_add_u32 s58, s58, %s' % lb)
        self.emit('s_add_u32 s58, s58, %d' % QA)
        self.emit('v_and_b32 v8, 1, v%d' % V_LANE)
        self.emit('v_lshlrev_b32 v8, 15, v8')
        self.emit('v_lshrrev_b32 v9, 5, v%d' % V_LANE)
        self.emit('v_lshlrev_b32 v9, 8, v9')
        self.emit('v_add_u32 v8, v8, v9')
        self.emit('v_lshrrev_b32 v9, 4, v%d' % V_LANE)
        self.emit('v_and_b32 v9, 1, v9')
        self.emit('v_lshlrev_b32 v9, 3, v9')
        self.emit('v_add_u32 v8, v8, v9')
        self.emit('s_mov_b32 s60, 0x00030003')
        self.emit('s_mov_b32 s61, 0x00030003')
        self.emit('s_mov_b64 exec, s[60:61]')
        self.st(data, 2, 8, 'WS', 's58', 0, True)
        self.emit('s_mov_b64 exec, -1')

    def pub_ql(self, data, clear, lb):
        self.emit('s_lshl_b32 s58, %s, 10' % S_R)
        self.emit('s_add_u32 s58, s58, %s' % lb)
        self.emit('s_add_u32 s58, s58, %d' % QL)
        self.local_stores(lambda sc: self.st(data, 4, V_L16, 'WS', 's58', 0, sc), clear)

    def pub_op(self, datafn, clear, lb):
        self.emit('s_lshl_b32 s58, %s, 15' % S_R)
        self.emit('s_lshl_b32 s59, %s, 10' % S_W)
        self.emit('s_add_u32 s58, s58, s59')
        self.emit('s_add_u32 s58, s58, %d' % OP)
        self.emit('s_add_u32 s59, s58, 8192')
        self.emit('s_add_u32 s62, s58, 16384')
        self.emit('s_add_u32 s63, s58, 24576')
        self.emit('v_lshrrev_b32 v8, 5, v%d' % V_LANE)
        self.emit('v_lshlrev_b32 v8, 12, v8')
        self.emit('v_and_b32 v9, 31, v%d' % V_LANE)
        self.emit('v_lshlrev_b32 v9, 3, v9')
        self.emit('v_add_u32 v8, v8, v9')
        so = ['s58', 's59', 's62', 's63']

        def f(sc):
            for nt in range(4):
                for g in range(4):
                    self.st(datafn(nt, g), 2, 8, 'WS', so[g], nt * 256, sc)
        self.local_stores(f, clear)

    def pub_st(self, data, clear, lb):
        skip = self.label('LS')
        self.emit('s_cmp_lg_u32 %s, 0' % S_W)
        self.emit('s_cbranch_scc1 %s' % skip)
        self.emit('s_lshr_b32 s58, %s, 7' % S_R)
        self.emit('s_lshl_b32 s58, s58, 15')
        self.emit('s_and_b32 s59, %s, 127' % S_R)
        self.emit('s_lshl_b32 s59, s59, 5')
        self.emit('s_add_u32 s58, s58, s59')
        self.emit('s_add_u32 s58, s58, %s' % lb)
        self.emit('s_add_u32 s58, s58, %d' % ST)
        self.emit('v_and_b32 v8, 31, v%d' % V_LANE)
        self.emit('v_lshrrev_b32 v9, 2, v8')
        self.emit('v_lshlrev_b32 v9, 12, v9')
        self.emit('v_and_b32 v8, 3, v8')
        self.emit('v_lshlrev_b32 v8, 2, v8')
        self.emit('v_add_u32 v8, v8, v9')
        self.emit('v_lshrrev_b32 v9, 5, v%d' % V_LANE)
        self.emit('v_lshlrev_b32 v9, 4, v9')
        self.emit('v_add_u32 v8, v8, v9')
        self.local_stores(lambda sc: self.st(data, 1, 8, 'WS', 's58', 0, sc), clear)
        self.place(skip)

    def pub_xo(self, data, lb):
        self.emit('s_lshl_b32 s58, %s, 11' % S_R)
        self.emit('s_add_u32 s58, s58, %s' % lb)
        self.emit('s_add_u32 s58, s58, %d' % XO)
        self.emit('v_lshlrev_b32 v8, 3, v0')
        self.st(data, 2, 8, 'WS', 's58', 0, True)

    def pub_xs(self, data, lb):
        skip = self.label('LS')
        self.emit('s_and_b32 s58, %s, 3' % S_J)
        self.emit('s_or_b32 s58, s58, %s' % S_W)
        self.emit('s_cmp_lg_u32 s58, 0')
        self.emit('s_cbranch_scc1 %s' % skip)
        self.emit('s_lshr_b32 s58, %s, 2' % S_R)
        self.emit('s_lshl_b32 s58, s58, 5')
        self.emit('s_add_u32 s58, s58, %s' % lb)
        self.emit('s_add_u32 s58, s58, %d' % XS)
        self.emit('v_mov_b32 v8, 0')
        self.emit('s_mov_b64 exec, 1')
        self.st(data, 4, 8, 'WS', 's58', 0, True)
        self.st(data + 4, 4, 8, 'WS', 's58', 16, True)
        self.emit('s_mov_b64 exec, -1')
        self.place(skip)

    def pub_cp(self, d0, d1, clear, lb):
        self.emit('s_lshl_b32 s58, %s, 15' % S_J)
        self.emit('s_lshl_b32 s59, %s, 2' % S_X)
        self.emit('s_add_u32 s59, s59, %s' % S_W)
        self.emit('s_lshl_b32 s59, s59, 9')
        self.emit('s_add_u32 s58, s58, s59')
        self.emit('s_add_u32 s58, s58, %s' % lb)
        self.emit('s_add_u32 s58, s58, %d' % CP)
        self.emit('s_add_u32 s59, s58, 16384')
        self.emit('v_lshlrev_b32 v8, 3, v%d' % V_LANE)

        def f(sc):
            self.st(d0, 2, 8, 'WS', 's58', 0, sc)
            self.st(d1, 2, 8, 'WS', 's59', 0, sc)
        self.local_stores(f, clear)

    def pub_po(self, base, d0, d1, clear, lb):
        self.emit('s_lshl_b32 s58, %s, 12' % S_R)
        self.emit('s_lshl_b32 s59, %s, 9' % S_W)
        self.emit('s_add_u32 s58, s58, s59')
        self.emit('s_add_u32 s58, s58, %s' % lb)
        self.emit('s_add_u32 s58, s58, %d' % base)
        self.emit('v_lshlrev_b32 v8, 3, v%d' % V_LANE)

        def f(sc):
            self.st(d0, 2, 8, 'WS', 's58', 0, sc)
            self.st(d1, 2, 8, 'WS', 's58', 2048, sc)
        self.local_stores(f, clear)

    def pub_xp(self, base, data, lb):
        skip = self.label('LS')
        self.emit('s_cmp_lg_u32 %s, 0' % S_W)
        self.emit('s_cbranch_scc1 %s' % skip)
        self.emit('s_lshl_b32 s58, %s, 7' % S_R)
        self.emit('s_add_u32 s58, s58, %s' % lb)
        self.emit('s_add_u32 s58, s58, %d' % base)
        self.emit('s_mov_b64 exec, 0xff')
        self.st(data, 4, V_L16, 'WS', 's58', 0, True)
        self.emit('s_mov_b64 exec, -1')
        self.place(skip)

    def clears(self, lb, early, late):
        if early:
            self.pub_qp(16, True, lb)
            self.pub_qa(16, True, lb)
            skip = self.label('LS')
            self.emit('s_cmp_lg_u32 %s, 0' % S_W)
            self.emit('s_cbranch_scc1 %s' % skip)
            self.pub_ql(16, True, lb)
            self.place(skip)
        if late:
            e = self.emit
            self.pub_st(16, True, lb)
            for i in range(20, 24):
                self.emit('v_mov_b32 v%d, -1' % i)
            self.pub_xs(16, lb)
            self.pub_xp(XP, 16, lb)
            self.pub_xp(XP2, 16, lb)
            skx = self.label('LS')
            e('s_cmp_lg_u32 %s, 0' % S_W)
            e('s_cbranch_scc1 %s' % skx)
            self.pub_xg(XG, 16, True, lb)
            self.pub_xg(XG2, 16, True, lb)
            self.place(skx)
            e('s_lshl_b32 s59, %s, 10' % S_W)
            e('s_lshl_b32 s58, %s, 12' % S_R)
            e('s_add_u32 s58, s58, s59')
            e('s_add_u32 s58, s58, %s' % lb)
            e('s_add_u32 s62, s58, %d' % PO)
            self.st(16, 4, V_L16, 'WS', 's62', 0, True)
            e('s_add_u32 s62, s58, %d' % PO2)
            self.st(16, 4, V_L16, 'WS', 's62', 0, True)
            e('s_lshl_b32 s58, %s, 1' % S_J)
            e('s_lshr_b32 s62, %s, 1' % S_W)
            e('s_add_u32 s58, s58, s62')
            e('s_lshl_b32 s58, s58, 14')
            e('s_lshl_b32 s62, %s, 11' % S_X)
            e('s_add_u32 s58, s58, s62')
            e('s_and_b32 s62, %s, 1' % S_W)
            e('s_lshl_b32 s62, s62, 10')
            e('s_add_u32 s58, s58, s62')
            e('s_add_u32 s58, s58, %s' % lb)
            e('s_add_u32 s58, s58, %d' % CP)
            self.st(16, 4, V_L16, 'WS', 's58', 0, True)
            skip = self.label('LS')
            e('s_cmp_ge_u32 %s, 2' % S_W)
            e('s_cbranch_scc1 %s' % skip)
            e('s_lshl_b32 s58, %s, 11' % S_R)
            e('s_add_u32 s58, s58, s59')
            e('s_add_u32 s58, s58, %s' % lb)
            e('s_add_u32 s58, s58, %d' % XO)
            self.st(16, 4, V_L16, 'WS', 's58', 0, True)
            self.place(skip)

    def prologue(self):
        e = self.emit
        e('s_cmp_ge_u32 s2, 256')
        e('s_cbranch_scc1 L_END')
        e('s_load_dwordx16 s[64:79], s[0:1], 0')
        e('s_load_dwordx8 s[80:87], s[0:1], 64')
        e('s_load_dwordx2 s[88:89], s[0:1], 96')
        e('v_lshrrev_b32 v1, 6, v0')
        e('v_readfirstlane_b32 %s, v1' % S_W)
        e('v_and_b32 v1, 63, v0')
        e('v_and_b32 v0, 255, v0')
        e('s_lshr_b32 s98, %s, 2' % S_W)
        e('s_and_b32 %s, %s, 3' % (S_W, S_W))
        e('v_lshlrev_b32 v2, 2, v1')
        e('v_lshlrev_b32 v3, 4, v1')
        e('s_and_b32 s58, s2, 7')
        e('s_lshl_b32 s58, s58, 5')
        e('s_lshr_b32 s59, s2, 3')
        e('s_or_b32 %s, s58, s59' % S_R)
        e('s_lshr_b32 %s, %s, 5' % (S_X, S_R))
        e('s_and_b32 %s, %s, 31' % (S_J, S_R))
        e('s_mov_b32 %s, 0' % S_LB)
        e('s_mov_b32 %s, 200000' % S_BUD)
        e('s_mov_b32 %s, 0' % S_MODE)
        e('s_mov_b32 s97, 0')
        e('s_waitcnt lgkmcnt(0)')
        ptrs = dict(X=(64, 2048), CKV=(66, 16777216), WQ=(68, 4194304), WUK=(70, 4194304), WUV=(72, 4194304),
                    WO=(74, 4194304), W1=(78, 1835008), W3=(80, 1835008), W2=(82, 1835008), OUT=(84, 2048),
                    DBG=(86, 256), WS=(88, 268435456))
        for n, (p, sz) in ptrs.items():
            b = SRD[n]
            e('s_mov_b32 s%d, s%d' % (b, p))
            e('s_and_b32 s%d, s%d, 0xffff' % (b + 1, p + 1))
            e('s_mov_b32 s%d, %d' % (b + 2, sz))
            e('s_mov_b32 s%d, 0x20000' % (b + 3))
        for i in range(16, 20):
            e('v_mov_b32 v%d, -1' % i)
        e('s_lshl_b32 s58, %s, 9' % S_W)
        e('v_lshlrev_b32 v8, 3, v1')
        self.ld(6, 2, 8, 'X', 's58')
        e('s_cmp_eq_u32 s98, 1')
        e('s_cbranch_scc1 L_GROUPB')

    def prologueA(self):
        e = self.emit
        nb = 0
        self.ts('start')
        e('s_and_b32 s58, %s, 3' % S_R)
        e('s_lshl_b32 s58, s58, 2')
        e('s_add_u32 s58, s58, %s' % S_W)
        e('s_lshl_b32 s58, s58, 18')
        e('s_lshr_b32 s59, %s, 2' % S_R)
        e('s_lshl_b32 s59, s59, 7')
        e('s_add_u32 s58, s58, s59')
        e('v_lshrrev_b32 v8, 3, v1')
        e('v_lshlrev_b32 v8, 13, v8')
        e('v_and_b32 v9, 7, v1')
        e('v_lshlrev_b32 v9, 4, v9')
        e('v_add_u32 v8, v8, v9')
        for i in range(4):
            self.ld(A_WQ + 4 * i, 4, 8, 'WQ', 's58', acc=True); nb += 1
            if i < 3:
                e('s_add_u32 s58, s58, 65536')
        e('s_barrier')
        self.heavy()
        e('s_waitcnt vmcnt(16)')

    def prologueB(self):
        e = self.emit
        nb = 0
        self.clears(S_LB, True, False)
        e('s_and_b32 s58, %s, 7' % S_R)
        e('s_lshl_b32 s58, s58, 2')
        e('s_add_u32 s58, s58, %s' % S_W)
        e('s_lshl_b32 s58, s58, 17')
        e('s_lshr_b32 s59, %s, 3' % S_R)
        e('s_lshl_b32 s59, s59, 8')
        e('s_add_u32 s58, s58, s59')
        e('v_and_b32 v8, 15, v1')
        e('v_lshlrev_b32 v8, 13, v8')
        e('v_lshrrev_b32 v9, 4, v1')
        e('v_lshlrev_b32 v9, 4, v9')
        e('v_add_u32 v8, v8, v9')
        for k in range(4):
            self.ld(A_WUK + 4 * k, 4, 8, 'WUK', 's58', 64 * k, acc=True); nb += 1
        ljoin = self.label('LJ')
        e('s_waitcnt vmcnt(4)')
        e('s_barrier')
        e('s_cmp_lg_u32 %s, 0' % S_W)
        e('s_cbranch_scc1 %s' % ljoin)
        e('s_getreg_b32 s58, hwreg(HW_REG_XCC_ID)')
        e('s_and_b32 s58, s58, 15')
        e('s_mul_i32 s59, s58, s58')
        e('s_lshl_b32 s59, s59, 16')
        e('s_lshl_b32 s58, s58, 6')
        e('s_add_u32 s58, s58, s59')
        e('s_add_u32 s58, s58, 1')
        e('v_mov_b32 v8, s58')
        e('s_lshl_b32 s59, %s, 5' % S_X)
        e('v_mov_b32 v9, s59')
        e('s_mov_b64 exec, 1')
        e('buffer_atomic_add v8, v9, %s, 0 offen sc1' % srd('DBG'))
        e('s_mov_b64 exec, -1')
        self.place(ljoin)
        self.clears(S_LB, False, True)

    def heavy(self):
        e = self.emit
        e('s_lshl_b32 s58, %s, 16' % S_R)
        e('s_lshl_b32 s59, %s, 14' % S_W)
        e('s_add_u32 s58, s58, s59')
        e('s_add_u32 s59, s59, %d' % L_CKV)
        e('s_mul_i32 s62, %s, 5' % S_R)
        e('s_lshl_b32 s63, %s, 2' % S_W)
        e('s_add_u32 s62, s62, s63')
        e('s_lshr_b32 s63, %s, 4' % S_R)
        e('s_add_u32 s62, s62, s63')
        for i in range(16):
            e('s_and_b32 s62, s62, 15')
            e('s_and_b32 s63, s62, 3')
            e('s_lshl_b32 s63, s63, 2')
            e('s_lshr_b32 s64, s62, 2')
            e('s_or_b32 s63, s63, s64')
            e('v_xor_b32 v8, s63, v1')
            e('v_lshlrev_b32 v8, 4, v8')
            e('s_lshl_b32 s64, s62, 10')
            e('s_add_u32 s65, s59, s64')
            e('s_mov_b32 m0, s65')
            e('s_add_u32 s65, s58, s64')
            if 'CKV' not in SKIP:
                e('buffer_load_dwordx4 v8, %s, s65 offen%s lds' % (srd('CKV'), ' nt' if 'CKV' in NT else ''))
            e('s_add_u32 s62, s62, 1')

    def bulk2(self, part):
        e = self.emit
        if part in (0, 1):
            e('s_lshl_b32 s58, %s, 17' % S_J)
            e('s_lshl_b32 s59, %s, 2' % S_X)
            e('s_add_u32 s59, s59, %s' % S_W)
            e('s_lshl_b32 s59, s59, 8')
            e('s_add_u32 s58, s58, s59')
            if part == 1:
                e('s_add_u32 s58, s58, 65536')
            for i in range(8 * part, 8 * part + 8):
                self.ld(A_WUV + i, 1, V_L4, 'WUV', 's58', acc=True)
                e('s_add_u32 s58, s58, 8192')
        if part in (2, 3):
            e('s_lshl_b32 s58, %s, 14' % S_R)
            e('s_lshl_b32 s59, %s, 8' % S_W)
            e('s_add_u32 s58, s58, s59')
            if part == 3:
                e('s_add_u32 s58, s58, 8192')
            for i in range(8 * (part - 2), 8 * (part - 2) + 8):
                self.ld(A_WO + i, 1, V_L4, 'WO', 's58', (i & 3) * 1024, acc=True)
                if (i & 3) == 3:
                    e('s_add_u32 s58, s58, 4096')
        if part in (4, 5):
            skip = self.label('LS')
            e('s_cmp_ge_u32 %s, 28' % S_J)
            e('s_cbranch_scc1 %s' % skip)
            e('s_mul_i32 s62, %s, 28' % S_X)
            e('s_add_u32 s62, s62, %s' % S_J)
            if part == 4:
                e('s_lshl_b32 s58, s62, 4')
                e('s_mul_i32 s59, %s, %d' % (S_W, 64 * 3584))
                e('s_add_u32 s58, s58, s59')
                e('s_add_u32 s59, s58, %d' % (256 * 3584))
                e('s_movk_i32 s63, 3584')
                e('v_mul_lo_u32 v8, v1, s63')
                self.ld(A_W1, 4, 8, 'W1', 's58', acc=True)
                self.ld(A_W1 + 4, 4, 8, 'W1', 's59', acc=True)
                self.ld(A_W3, 4, 8, 'W3', 's58', acc=True)
                self.ld(A_W3 + 4, 4, 8, 'W3', 's59', acc=True)
            else:
                e('s_lshl_b32 s58, s62, 13')
                e('s_lshl_b32 s59, %s, 8' % S_W)
                e('s_add_u32 s58, s58, s59')
                for i in range(8):
                    self.ld(A_W2 + i, 1, V_L4, 'W2', 's58', (i & 3) * 1024, acc=True)
                    if i == 3:
                        e('s_add_u32 s58, s58, 4096')
            self.place(skip)

    def flagwait(self):
        e = self.emit
        l0, l1 = self.label('LP'), self.label('LD')
        e('v_and_b32 v10, 7, v1')
        e('v_lshlrev_b32 v10, 5, v10')
        self.place(l0)
        self.ld(8, 1, 10, 'DBG', '0', 0, True)
        e('s_waitcnt vmcnt(0)')
        e('v_and_b32 v9, 63, v8')
        e('v_cmp_ne_u32 vcc, 32, v9')
        e('s_cbranch_vccz %s' % l1)
        e('s_cmp_eq_u32 %s, 0' % S_BUD)
        e('s_cbranch_scc1 %s' % l1)
        e('s_sub_u32 %s, %s, 1' % (S_BUD, S_BUD))
        e('s_branch %s' % l0)
        self.place(l1)
        e('v_readlane_b32 s58, v8, %s' % S_X)
        e('s_lshr_b32 s59, s58, 16')
        e('s_lshl_b32 s59, s59, 5')
        e('s_lshr_b32 s58, s58, 6')
        e('s_and_b32 s58, s58, 0x3ff')
        e('s_mul_i32 s58, s58, s58')
        e('s_cmp_eq_u32 s58, s59')
        e('s_cselect_b32 %s, 1, 0' % S_MODE)
        if os.environ.get('SLOW', '0') == '1':
            e('s_mov_b32 %s, 0' % S_MODE)
        e('v_mov_b32 v8, %s' % S_MODE)
        e('v_mov_b32 v9, 0')
        e('ds_write_b32 v9, v8 offset:%d' % L_MD)

    def pub_xg(self, base, data, clear, lb):
        self.emit('s_lshl_b32 s58, %s, 7' % S_R)
        self.emit('s_add_u32 s58, s58, %s' % lb)
        self.emit('s_add_u32 s58, s58, %d' % base)
        self.emit('s_mov_b64 exec, 0xff')
        self.local_stores(lambda sc: self.st(data, 4, V_L16, 'WS', 's58', 0, sc), clear)
        self.emit('s_mov_b64 exec, -1')

    def gather_x(self, base, lb):
        e = self.emit
        loc = XG if base == XP else XG2
        skip = self.label('LS')
        e('s_cmp_lg_u32 %s, 0' % S_W)
        e('s_cbranch_scc1 %s' % skip)
        e('s_lshl_b32 s58, %s, 7' % S_J)
        e('s_add_u32 s58, s58, %s' % lb)
        e('s_add_u32 s58, s58, %d' % base)
        e('v_lshrrev_b32 v9, 3, v1')
        e('v_lshlrev_b32 v9, 12, v9')
        e('v_and_b32 v10, 7, v1')
        e('v_lshlrev_b32 v10, 4, v10')
        e('v_add_u32 v9, v9, v10')
        prof, self.prof = self.prof, False
        self.poll(lambda: self.ld(16, 4, 9, 'WS', 's58', 0, True), range(16, 20), 8)
        self.prof = prof
        for k in range(4):
            e('v_add_f32_dpp v%d, v%d, v%d row_ror:8 row_mask:0xf bank_mask:0xf' % (16 + k, 16 + k, 16 + k))
        for k in range(4):
            self.xswap('v_add_f32', 16 + k, 20 + k, 16)
        for k in range(4):
            self.xswap('v_add_f32', 16 + k, 20 + k, 32)
        self.clamp(range(16, 20))
        self.pub_xg(loc, 16, False, lb)
        self.place(skip)
        e('s_lshl_b32 s58, %s, 12' % S_X)
        e('s_lshl_b32 s59, %s, 10' % S_W)
        e('s_add_u32 s58, s58, s59')
        e('s_add_u32 s58, s58, %s' % lb)
        e('s_add_u32 s58, s58, %d' % loc)
        self.poll(lambda: self.ld(16, 4, V_L16, 'WS', 's58', 0, True), range(16, 20), 8)
        for k in range(4):
            self.bf16r(16 + k, 16 + k)
        for k in range(4):
            e('v_add_f32 v%d, v%d, v%d' % (V_XO + k, V_XO + k, 16 + k))
        for k in range(4):
            self.bf16r(V_XO + k, V_XO + k)

    def layernorm(self, L_XN=L_XN, L_XL=L_XL, hook=None):
        e = self.emit
        e('v_add_f32 v16, v4, v5')
        e('v_add_f32 v17, v6, v7')
        e('v_add_f32 v16, v16, v17')
        self.dpp_reduce('v_add_f32', [16])
        e('s_lshl_b32 s58, %s, 2' % S_W)
        e('v_mov_b32 v9, s58')
        e('s_and_b32 s59, s58, 8')
        e('v_mov_b32 v10, s59')
        e('v_readlane_b32 s60, v16, 63')
        e('v_mov_b32 v17, s60')
        e('ds_write_b32 v9, v17 offset:%d' % L_XL)
        e('s_waitcnt lgkmcnt(0)')
        e('s_barrier')
        e('ds_read_b64 v[16:17], v10 offset:%d' % L_XL)
        e('v_mov_b32 v22, %s' % f32hex(1.0 / 512))
        e('s_waitcnt lgkmcnt(0)')
        e('v_add_f32 v16, v16, v17')
        e('v_mul_f32 v20, v16, v22')
        for k in range(4):
            e('v_sub_f32 v%d, v%d, v20' % (24 + k, 4 + k))
        e('v_mul_f32 v16, v24, v24')
        e('v_mul_f32 v17, v26, v26')
        e('v_fmac_f32 v16, v25, v25')
        e('v_fmac_f32 v17, v27, v27')
        e('v_add_f32 v16, v16, v17')
        self.dpp_reduce('v_add_f32', [16])
        self.bf16r(20, 20)
        e('v_readlane_b32 s60, v16, 63')
        e('v_mov_b32 v17, s60')
        e('ds_write_b32 v9, v17 offset:%d' % (L_XL + 16))
        for k in range(4):
            e('v_sub_f32 v%d, v%d, v20' % (24 + k, 4 + k))
        for k in range(4):
            self.bf16r(24 + k, 24 + k)
        e('s_waitcnt lgkmcnt(0)')
        e('s_barrier')
        e('ds_read_b64 v[16:17], v10 offset:%d' % (L_XL + 16))
        e('v_lshlrev_b32 v8, 4, v0')
        e('s_waitcnt lgkmcnt(0)')
        e('v_add_f32 v16, v16, v17')
        e('v_mul_f32 v16, v16, v22')
        self.bf16r(16, 16)
        e('v_add_f32 v16, %s, v16' % f32hex(1e-5))
        self.bf16r(16, 16)
        e('v_sqrt_f32 v16, v16')
        self.bf16r(16, 16)
        e('v_rcp_f32 v17, v16')
        e('v_fma_f32 v18, -v16, v17, 2.0')
        e('v_mul_f32 v17, v17, v18')
        for k in range(4):
            e('v_mul_f32 v%d, v%d, v17' % (24 + k, 24 + k))
        for k in range(4):
            self.bf16r(24 + k, 24 + k)
        e('ds_write_b128 v8, v[24:27] offset:%d' % L_XN)
        e('s_waitcnt lgkmcnt(0)')
        e('s_barrier')

    def p1(self):
        e = self.emit
        e('s_and_b32 s58, %s, 3' % S_R)
        e('s_lshl_b32 s58, s58, 2')
        e('s_add_u32 s58, s58, %s' % S_W)
        e('s_lshl_b32 s58, s58, 7')
        e('v_lshrrev_b32 v8, 3, v1')
        e('v_lshlrev_b32 v8, 2, v8')
        e('v_add_u32 v8, s58, v8')
        for i in range(4):
            for b in range(2):
                e('ds_read_b32 v%d, v8 offset:%d' % (16 + 2 * i + b, L_XN + b * 2048 + i * 32))
        for k in range(16):
            e('v_mov_b32 v%d, 0' % (32 + k))
        e('s_waitcnt lgkmcnt(0)')
        for i in range(4):
            for d in range(4):
                e('v_accvgpr_read_b32 v24, a%d' % (A_WQ + 4 * i + d))
                self.unpack(25, 26, 24)
                for b in range(2):
                    e('v_fmac_f32 v%d, v%d, v25' % (32 + 8 * b + 2 * d, 16 + 2 * i + b))
                    e('v_fmac_f32 v%d, v%d, v26' % (32 + 8 * b + 2 * d + 1, 16 + 2 * i + b))
        for k in range(8):
            e('v_permlane32_swap_b32 v%d, v%d' % (32 + k, 40 + k))
            e('v_add_f32 v%d, v%d, v%d' % (32 + k, 32 + k, 40 + k))
        for k in range(4):
            e('v_permlane16_swap_b32 v%d, v%d' % (32 + k, 36 + k))
            e('v_add_f32 v%d, v%d, v%d' % (32 + k, 32 + k, 36 + k))
        for k in range(4):
            e('v_add_f32_dpp v%d, v%d, v%d row_ror:8 row_mask:0xf bank_mask:0xf' % (32 + k, 32 + k, 32 + k))
        e('v_and_b32 v8, 7, v1')
        e('v_lshlrev_b32 v8, 5, v8')
        e('v_lshrrev_b32 v9, 4, v1')
        e('v_and_b32 v9, 1, v9')
        e('v_lshlrev_b32 v9, 4, v9')
        e('v_add_u32 v8, v8, v9')
        e('v_lshrrev_b32 v9, 5, v1')
        e('v_lshlrev_b32 v9, 8, v9')
        e('v_add_u32 v8, v8, v9')
        e('s_lshl_b32 s58, %s, 9' % S_W)
        e('v_add_u32 v8, s58, v8')
        e('ds_write_b128 v8, v[32:35] offset:%d' % L_RQ)
        e('s_waitcnt lgkmcnt(0)')
        e('s_barrier')
        e('s_and_b32 s58, %s, 1' % S_W)
        e('s_lshl_b32 s58, s58, 8')
        e('v_add_u32 v8, s58, v2')
        for w in range(4):
            e('ds_read_b32 v%d, v8 offset:%d' % (16 + w, L_RQ + 512 * w))
        e('s_waitcnt lgkmcnt(0)')
        e('v_add_f32 v16, v16, v17')
        e('v_add_f32 v18, v18, v19')
        e('v_add_f32 v16, v16, v18')
        self.clamp([16])

    def p2(self):
        e = self.emit
        e('s_lshr_b32 s58, %s, 3' % S_R)
        e('s_lshl_b32 s58, s58, 9')
        e('s_add_u32 s58, s58, %s' % S_LB)
        e('s_add_u32 s58, s58, %d' % QP)
        e('s_add_u32 s59, s58, 32768')
        e('s_add_u32 s62, s58, 65536')
        e('s_add_u32 s63, s58, 98304')
        e('v_lshrrev_b32 v9, 5, v1')
        e('v_lshlrev_b32 v9, 14, v9')
        e('v_and_b32 v10, 31, v1')
        e('v_lshlrev_b32 v10, 4, v10')
        e('v_add_u32 v9, v9, v10')
        so = ['s58', 's59', 's62', 's63']

        def loads():
            for ks in range(4):
                self.ld(16 + 4 * ks, 4, 9, 'WS', so[ks], 0, True)
        self.poll(loads, range(16, 32), 8)
        for k in range(4):
            e('v_add_f32 v%d, v%d, v%d' % (16 + k, 16 + k, 20 + k))
            e('v_add_f32 v%d, v%d, v%d' % (24 + k, 24 + k, 28 + k))
        for k in range(4):
            e('v_add_f32 v%d, v%d, v%d' % (16 + k, 16 + k, 24 + k))
        e('v_cvt_pk_bf16_f32 v20, v16, v17')
        e('v_cvt_pk_bf16_f32 v21, v18, v19')
        e('s_lshl_b32 s58, %s, 9' % S_W)
        e('v_lshlrev_b32 v8, 3, v1')
        e('v_add_u32 v8, s58, v8')
        e('ds_write_b64 v8, v[20:21] offset:%d' % L_QS)
        e('v_and_b32 v8, 1, v1')
        e('v_lshlrev_b32 v8, 8, v8')
        e('v_lshrrev_b32 v9, 4, v1')
        e('v_lshlrev_b32 v9, 4, v9')
        e('v_add_u32 v8, v8, v9')
        e('v_add_u32 v8, s58, v8')
        e('s_waitcnt lgkmcnt(0)')
        for k in range(4):
            e('ds_read_b128 v[%d:%d], v8 offset:%d' % (24 + 4 * k, 27 + 4 * k, L_QS + 64 * k))
        for k in range(4):
            e('v_mov_b32 v%d, 0' % (16 + k))
        e('s_waitcnt lgkmcnt(0)')
        for k in range(4):
            e('v_mfma_f32_16x16x32_bf16 v[16:19], a[%d:%d], v[%d:%d], v[16:19]' % (A_WUK + 4 * k, A_WUK + 4 * k + 3, 24 + 4 * k, 27 + 4 * k))
        e('s_mov_b32 s58, %s' % f32hex(SCALE))
        for k in range(4):
            e('v_mul_f32 v%d, s58, v%d' % (16 + k, 16 + k))
        e('v_cvt_pk_bf16_f32 v20, v16, v17')
        e('v_cvt_pk_bf16_f32 v21, v18, v19')
        self.clamp([20, 21])
        self.pub_qa(20, False, S_LB)

    def p2b(self):
        e = self.emit
        skip = self.label('LS')
        e('s_cmp_lg_u32 %s, 0' % S_W)
        e('s_cbranch_scc1 %s' % skip)
        e('s_lshr_b32 s58, %s, 2' % S_X)
        e('s_lshl_b32 s58, s58, 15')
        e('s_lshl_b32 s59, %s, 10' % S_J)
        e('s_add_u32 s58, s58, s59')
        e('s_add_u32 s58, s58, %s' % S_LB)
        e('s_add_u32 s58, s58, %d' % QA)
        self.poll(lambda: self.ld(16, 4, V_L16, 'WS', 's58', 0, True), range(16, 20), 8)
        self.pub_ql(16, False, S_LB)
        self.place(skip)

    def p3(self, first):
        e = self.emit
        AC = 64
        PF = 16
        TMP = 16
        AO = 112
        CF = 80
        ADR = 72
        e('s_lshl_b32 s58, %s, 15' % S_X)
        e('s_lshl_b32 s59, %s, 13' % S_W)
        e('s_add_u32 s58, s58, s59')
        e('s_add_u32 s58, s58, %s' % S_LB)
        e('s_add_u32 s58, s58, %d' % QL)
        e('s_add_u32 s62, s58, 4096')

        def loads():
            for q in range(8):
                self.ld(16 + 4 * q, 4, V_L16, 'WS', 's58' if q < 4 else 's62', (q & 3) * 1024, True)
        self.poll(loads, range(16, 48), 8)
        PS = 112
        e('v_and_b32 v8, 3, v1')
        e('v_lshlrev_b32 v8, 2, v8')
        e('v_lshrrev_b32 v9, 2, v1')
        e('v_and_b32 v9, 3, v9')
        e('v_or_b32 v8, v8, v9')
        e('v_lshrrev_b32 v9, 4, v1')
        e('v_xor_b32 v8, v8, v9')
        e('v_lshlrev_b32 v8, 4, v8')
        e('v_and_b32 v9, 15, v1')
        e('v_lshlrev_b32 v9, 10, v9')
        e('v_or_b32 v8, v8, v9')
        e('s_lshl_b32 s58, %s, 8' % S_W)
        e('s_or_b32 s58, s58, %d' % L_CKV)
        e('v_or_b32 v8, s58, v8')
        for q in range(4):
            e('v_xor_b32 v%d, %d, v8' % (ADR + q, q << 6))
        e('s_barrier')
        e('v_mov_b32 v9, 0')
        e('ds_read_b32 v8, v9 offset:%d' % L_MD)
        e('s_waitcnt lgkmcnt(0)')
        e('v_readfirstlane_b32 %s, v8' % S_MODE)
        self.ts('p3_b1', 60)

        def issue(kt):
            for u in range(4):
                r0 = CF + 16 * (kt & 1) + 4 * u
                e('ds_read_b128 v[%d:%d], v%d offset:%d' % (r0, r0 + 3, ADR + u, kt * 16384))
        issue(0)
        e('v_add_u32 v9, s59, v3')
        for kt in range(4):
            if kt < 3:
                issue(kt + 1)
                e('s_waitcnt lgkmcnt(%d)' % (4 if kt < 2 else 6))
            else:
                e('s_waitcnt lgkmcnt(2)')
            for u in range(4):
                for ht in range(2):
                    d = PS + 8 * kt + 4 * ht
                    c = '0' if u == 0 else 'v[%d:%d]' % (d, d + 3)
                    r0 = CF + 16 * (kt & 1) + 4 * u
                    e('v_mfma_f32_16x16x32_bf16 v[%d:%d], v[%d:%d], v[%d:%d], %s' % (
                        d, d + 3, r0, r0 + 3, 16 + 8 * u + 4 * ht, 19 + 8 * u + 4 * ht, c))
            if kt > 0:
                for ht in range(2):
                    d = PS + 8 * (kt - 1) + 4 * ht
                    e('ds_write_b128 v9, v[%d:%d] offset:%d' % (d, d + 3, L_SX + (2 * (kt - 1) + ht) * 1024))
        for ht in range(2):
            d = PS + 8 * 3 + 4 * ht
            e('ds_write_b128 v9, v[%d:%d] offset:%d' % (d, d + 3, L_SX + (6 + ht) * 1024))
        e('s_lshl_b32 s58, %s, 11' % S_W)
        e('v_add_u32 v9, s58, v3')
        e('s_waitcnt lgkmcnt(0)')
        e('s_barrier')
        for src in range(4):
            for ht in range(2):
                r0 = 16 + 8 * src + 4 * ht
                e('ds_read_b128 v[%d:%d], v9 offset:%d' % (r0, r0 + 3, L_SX + src * 8192 + ht * 1024))
        e('s_waitcnt lgkmcnt(0)')
        for k in range(8):
            e('v_add_f32 v%d, v%d, v%d' % (16 + k, 16 + k, 24 + k))
            e('v_add_f32 v%d, v%d, v%d' % (32 + k, 32 + k, 40 + k))
        for k in range(8):
            e('v_add_f32 v%d, v%d, v%d' % (AC + k, 16 + k, 32 + k))
        self.ts('p3_S', 60)
        e('v_and_b32 v8, 15, v1')
        e('v_lshlrev_b32 v8, 4, v8')
        e('s_lshl_b32 s58, %s, 2' % S_W)
        e('v_add_u32 v9, s58, v8')
        for ht in range(2):
            e('v_max3_f32 v%d, v%d, v%d, v%d' % (10 + ht, AC + 4 * ht, AC + 4 * ht + 1, AC + 4 * ht + 2))
        for ht in range(2):
            e('v_max_f32 v%d, v%d, v%d' % (10 + ht, 10 + ht, AC + 4 * ht + 3))
        for ht in range(2):
            self.xswap('v_max_f32', 10 + ht, 12 + ht, 16)
        for ht in range(2):
            self.xswap('v_max_f32', 10 + ht, 12 + ht, 32)
        for ht in range(2):
            e('ds_write_b32 v9, v%d offset:%d' % (10 + ht, L_MX + 256 * ht))
        e('s_waitcnt lgkmcnt(0)')
        e('s_barrier')
        self.ts('p3_b2', 60)
        for ht in range(2):
            e('ds_read_b128 v[%d:%d], v8 offset:%d' % (16 + 4 * ht, 19 + 4 * ht, L_MX + 256 * ht))
        e('v_and_b32 v14, 15, v1')
        e('v_mul_u32_u24 v14, 144, v14')
        e('v_lshrrev_b32 v15, 4, v1')
        e('v_lshlrev_b32 v15, 3, v15')
        e('v_add_u32 v14, v14, v15')
        e('s_lshl_b32 s58, %s, 5' % S_W)
        e('v_add_u32 v14, s58, v14')
        e('s_waitcnt lgkmcnt(0)')
        for ht in range(2):
            e('v_max3_f32 v%d, v%d, v%d, v%d' % (10 + ht, 16 + 4 * ht, 17 + 4 * ht, 18 + 4 * ht))
        for ht in range(2):
            e('v_max_f32 v%d, v%d, v%d' % (10 + ht, 10 + ht, 19 + 4 * ht))
        for ht in range(2):
            for i in range(4):
                e('v_sub_f32 v%d, v%d, v%d' % (AC + 4 * ht + i, AC + 4 * ht + i, 10 + ht))
        for k in range(8):
            e('v_exp_f32 v%d, v%d' % (AC + k, AC + k))
        for ht in range(2):
            e('v_cvt_pk_bf16_f32 v%d, v%d, v%d' % (16 + 2 * ht, AC + 4 * ht, AC + 4 * ht + 1))
            e('v_cvt_pk_bf16_f32 v%d, v%d, v%d' % (17 + 2 * ht, AC + 4 * ht + 2, AC + 4 * ht + 3))
        for ht in range(2):
            e('ds_write_b64 v14, v[%d:%d] offset:%d' % (16 + 2 * ht, 17 + 2 * ht, L_PL + 16 * 144 * ht))
        for ht in range(2):
            e('v_add_f32 v%d, v%d, v%d' % (10 + ht, AC + 4 * ht, AC + 4 * ht + 1))
            e('v_add_f32 v%d, v%d, v%d' % (12 + ht, AC + 4 * ht + 2, AC + 4 * ht + 3))
        for ht in range(2):
            e('v_add_f32 v%d, v%d, v%d' % (10 + ht, 10 + ht, 12 + ht))
        for ht in range(2):
            self.xswap('v_add_f32', 10 + ht, 12 + ht, 16)
        for ht in range(2):
            self.xswap('v_add_f32', 10 + ht, 12 + ht, 32)
        for ht in range(2):
            e('ds_write_b32 v9, v%d offset:%d' % (10 + ht, L_LW + 256 * ht))
        e('v_and_b32 v9, 15, v1')
        e('v_lshrrev_b32 v9, 2, v9')
        e('v_lshrrev_b32 v11, 5, v1')
        e('v_lshlrev_b32 v8, 3, v11')
        e('v_add_u32 v8, v8, v9')
        e('v_lshlrev_b32 v8, 10, v8')
        e('v_lshlrev_b32 v9, 6, v9')
        e('v_or_b32 v8, v8, v9')
        e('v_lshrrev_b32 v9, 4, v1')
        e('v_xor_b32 v9, v9, v11')
        e('v_and_b32 v9, 1, v9')
        e('v_lshlrev_b32 v9, 5, v9')
        e('v_or_b32 v8, v8, v9')
        e('v_and_b32 v9, 2, v1')
        e('v_lshlrev_b32 v9, 3, v9')
        e('v_or_b32 v8, v8, v9')
        e('v_and_b32 v9, 1, v1')
        e('v_lshlrev_b32 v9, 3, v9')
        e('v_or_b32 v8, v8, v9')
        e('s_lshl_b32 s58, %s, 8' % S_W)
        e('s_or_b32 s58, s58, %d' % L_CKV)
        e('v_or_b32 v8, s58, v8')
        for nt in range(4):
            for j in range(2):
                e('v_xor_b32 v%d, 0x%x, v8' % (ADR + 2 * nt + j, (nt << 6) | (j * 0x1010)))
        e('v_and_b32 v9, 31, v1')
        e('v_mul_u32_u24 v9, 144, v9')
        e('v_lshlrev_b32 v11, 4, v11')
        e('v_add_u32 v9, v9, v11')
        e('s_waitcnt lgkmcnt(0)')
        e('s_barrier')
        self.ts('p3_b3', 60)
        for ks in range(4):
            e('ds_read_b128 v[%d:%d], v9 offset:%d' % (PF + 4 * ks, PF + 4 * ks + 3, L_PL + 32 * ks))
        e('v_and_b32 v8, 31, v1')
        e('v_lshlrev_b32 v8, 4, v8')
        e('ds_read_b128 v[48:51], v8 offset:%d' % L_MX)
        e('ds_read_b128 v[52:55], v8 offset:%d' % L_LW)
        e('s_lshl_b32 s58, %s, 15' % S_R)
        e('s_lshl_b32 s59, %s, 10' % S_W)
        e('s_add_u32 s58, s58, s59')
        e('s_add_u32 s58, s58, %d' % OP)
        e('s_add_u32 s59, s58, 8192')
        e('s_add_u32 s62, s58, 16384')
        e('s_add_u32 s63, s58, 24576')
        e('v_lshrrev_b32 v8, 5, v1')
        e('v_lshlrev_b32 v8, 12, v8')
        e('v_and_b32 v9, 31, v1')
        e('v_lshlrev_b32 v9, 3, v9')
        e('v_add_u32 v8, v8, v9')
        so = ['s58', 's59', 's62', 's63']

        def tr(nt):
            for kstep in range(4):
                for j in range(2):
                    r0 = CF + 16 * (nt & 1) + 4 * kstep + 2 * j
                    e('ds_read_b64_tr_b16 v[%d:%d], v%d offset:%d' % (r0, r0 + 1, ADR + 2 * nt + j, kstep * 16384))

        def packstore(nt):
            for g in range(4):
                a = AO + 16 * nt + 4 * g
                d = 32 + 8 * (nt & 1) + 2 * g
                e('v_cvt_pk_bf16_f32 v%d, v%d, v%d' % (d, a, a + 1))
                e('v_cvt_pk_bf16_f32 v%d, v%d, v%d' % (d + 1, a + 2, a + 3))

            def f(sc):
                for g in range(4):
                    self.st(32 + 8 * (nt & 1) + 2 * g, 2, 8, 'WS', so[g], nt * 256, sc, os.environ.get('OPNT', '0') == '1')
            self.local_stores(f, False)
        tr(0)
        for nt in range(4):
            if nt < 3:
                tr(nt + 1)
                e('s_waitcnt lgkmcnt(8)')
            else:
                e('s_waitcnt lgkmcnt(0)')
            for kstep in range(4):
                c = '0' if kstep == 0 else 'v[%d:%d]' % (AO + 16 * nt, AO + 16 * nt + 15)
                e('v_mfma_f32_32x32x16_bf16 v[%d:%d], v[%d:%d], v[%d:%d], %s' % (
                    AO + 16 * nt, AO + 16 * nt + 15, PF + 4 * kstep, PF + 4 * kstep + 3,
                    CF + 16 * (nt & 1) + 4 * kstep, CF + 16 * (nt & 1) + 4 * kstep + 3, c))
                if kstep == 1 and nt > 0:
                    packstore(nt - 1)
        packstore(3)
        e('s_waitcnt lgkmcnt(0)')
        e('v_max3_f32 v10, v48, v49, v50')
        e('v_max_f32 v10, v10, v51')
        e('v_add_f32 v12, v52, v53')
        e('v_add_f32 v13, v54, v55')
        e('v_add_f32 v12, v12, v13')
        e('v_cmp_gt_u32 vcc, 32, v1')
        e('v_cndmask_b32 v13, v12, v10, vcc')
        self.clamp([13])
        self.ts('p3_st', 60)
        e('s_waitcnt vmcnt(0)')
        self.ts('p3_ack', 60)
        e('s_barrier')
        self.pub_st(13, False, S_LB)

    def p3b(self):
        e = self.emit
        e('s_lshr_b32 s58, %s, 2' % S_X)
        e('s_lshl_b32 s58, s58, 3')
        e('s_lshr_b32 s59, %s, 2' % S_J)
        e('s_add_u32 s58, s58, s59')
        e('s_lshl_b32 s58, s58, 12')
        e('s_and_b32 s62, %s, 3' % S_X)
        e('s_lshl_b32 s62, s62, 10')
        e('s_add_u32 s58, s58, s62')
        e('s_add_u32 s58, s58, %s' % S_LB)
        e('s_add_u32 s58, s58, %d' % ST)
        e('v_and_b32 v9, 31, v1')
        e('v_lshlrev_b32 v9, 5, v9')
        e('s_lshl_b32 s62, %s, 5' % S_X)
        e('s_lshl_b32 s63, %s, 3' % S_W)
        e('s_add_u32 s62, s62, s63')
        e('s_lshl_b32 s62, s62, 15')
        e('s_lshl_b32 s59, s59, 12')
        e('s_add_u32 s62, s62, s59')
        e('s_and_b32 s59, %s, 3' % S_J)
        e('s_lshl_b32 s59, s59, 10')
        e('s_add_u32 s62, s62, s59')
        e('s_add_u32 s64, s62, %d' % OP)
        for q in range(1, 8):
            e('s_add_u32 s%d, s64, %d' % (64 + q, 32768 * q))

        def loads():
            self.ld(16, 4, 9, 'WS', 's58', 0, True)
            self.ld(20, 4, 9, 'WS', 's58', 16, True)
        self.poll(loads, range(16, 24), 8)
        for q in range(8):
            self.ld(24 + 4 * q, 4, V_L16, 'WS', 's%d' % (64 + q), 0, True)
        for h in range(4):
            e('v_mov_b32 v%d, v%d' % (56 + h, 16 + h))
        self.dpp_reduce('v_max_f32', [56, 57, 58, 59])
        for h in range(4):
            e('v_readlane_b32 s%d, v%d, 63' % (72 + h, 56 + h))
        for h in range(4):
            e('v_subrev_f32 v%d, s%d, v%d' % (56 + h, 72 + h, 16 + h))
        for h in range(4):
            e('v_exp_f32 v%d, v%d' % (56 + h, 56 + h))
        for h in range(4):
            e('v_mul_f32 v%d, v%d, v%d' % (60 + h, 56 + h, 20 + h))
        self.dpp_reduce('v_add_f32', [60, 61, 62, 63], full=False)
        for h in range(4):
            e('v_readlane_b32 s%d, v%d, 31' % (76 + h, 60 + h))
        for k in range(8):
            e('v_mov_b32 v%d, 0' % (64 + k))
        e('s_lshl_b32 s58, %s, 3' % S_W)
        for q in range(8):
            e('s_waitcnt vmcnt(%d)' % (7 - q))
            for h in range(4):
                e('v_readlane_b32 s%d, v%d, s58' % (80 + h, 56 + h))
            e('s_add_u32 s58, s58, 1')
            for c in range(2):
                for hp in range(2):
                    src = 24 + 4 * q + 2 * c + hp
                    self.unpack(10, 11, src)
                    e('v_fma_f32 v%d, s%d, v10, v%d' % (64 + 4 * c + 2 * hp, 80 + 2 * hp, 64 + 4 * c + 2 * hp))
                    e('v_fma_f32 v%d, s%d, v11, v%d' % (64 + 4 * c + 2 * hp + 1, 80 + 2 * hp + 1, 64 + 4 * c + 2 * hp + 1))
        e('v_lshlrev_b32 v8, 5, v0')
        e('ds_write_b128 v8, v[64:67] offset:%d' % L_AC)
        e('ds_write_b128 v8, v[68:71] offset:%d' % (L_AC + 16))
        e('s_waitcnt lgkmcnt(0)')
        e('s_barrier')
        e('v_lshlrev_b32 v8, 3, v0')
        for w in range(4):
            e('ds_read_b64 v[%d:%d], v8 offset:%d' % (16 + 2 * w, 17 + 2 * w, L_AC + 2048 * w))
        e('s_waitcnt lgkmcnt(0)')
        for k in range(2):
            e('v_add_f32 v%d, v%d, v%d' % (16 + k, 16 + k, 18 + k))
            e('v_add_f32 v%d, v%d, v%d' % (20 + k, 20 + k, 22 + k))
        for k in range(2):
            e('v_add_f32 v%d, v%d, v%d' % (16 + k, 16 + k, 20 + k))
        self.clamp([16, 17])
        self.pub_xo(16, S_LB)
        for k in range(8):
            e('v_mov_b32 v%d, s%d' % (24 + k, 72 + k))
        self.clamp(range(24, 32))
        self.pub_xs(24, S_LB)

    def p4(self):
        e = self.emit
        e('s_lshl_b32 s58, %s, 13' % S_X)
        e('s_lshl_b32 s59, %s, 8' % S_J)
        e('s_add_u32 s58, s58, s59')
        e('s_lshl_b32 s59, %s, 2' % S_W)
        e('s_add_u32 s58, s58, s59')
        e('s_add_u32 s58, s58, %s' % S_LB)
        e('s_add_u32 s58, s58, %d' % XO)
        e('s_add_u32 s59, s58, %d' % (4 * 8 * 8192))
        e('v_lshrrev_b32 v9, 4, v1')
        e('v_lshlrev_b32 v10, 16, v9')
        e('v_and_b32 v11, 15, v1')
        e('v_lshlrev_b32 v11, 4, v11')
        e('v_add_u32 v10, v10, v11')
        e('s_lshl_b32 s62, %s, 5' % S_X)
        e('s_lshl_b32 s63, %s, 2' % S_W)
        e('s_add_u32 s62, s62, s63')
        e('s_add_u32 s62, s62, %s' % S_LB)
        e('s_add_u32 s62, s62, %d' % XS)
        e('v_lshlrev_b32 v9, 8, v9')

        def loads():
            self.ld(16, 1, 10, 'WS', 's58', 0, True)
            self.ld(17, 1, 10, 'WS', 's59', 0, True)
            self.ld(18, 1, 9, 'WS', 's62', 0, True)
            self.ld(19, 1, 9, 'WS', 's62', 1024, True)
            self.ld(20, 1, 9, 'WS', 's62', 16, True)
            self.ld(21, 1, 9, 'WS', 's62', 1040, True)
        self.poll(loads, range(16, 22), 8)
        for b in range(2):
            e('v_mov_b32 v%d, v%d' % (22 + b, 18 + b))
        for b in range(2):
            self.xswap('v_max_f32', 22 + b, 24 + b, 16)
        for b in range(2):
            self.xswap('v_max_f32', 22 + b, 24 + b, 32)
        for b in range(2):
            e('v_sub_f32 v%d, v%d, v%d' % (18 + b, 18 + b, 22 + b))
        for b in range(2):
            e('v_exp_f32 v%d, v%d' % (18 + b, 18 + b))
        for b in range(2):
            e('v_mul_f32 v%d, v%d, v%d' % (16 + b, 16 + b, 18 + b))
            e('v_mul_f32 v%d, v%d, v%d' % (20 + b, 20 + b, 18 + b))
        for r in (16, 17, 20, 21):
            self.xswap('v_add_f32', r, 24, 16)
        for r in (16, 17, 20, 21):
            self.xswap('v_add_f32', r, 24, 32)
        for b in range(2):
            e('v_rcp_f32 v%d, v%d' % (22 + b, 20 + b))
        for b in range(2):
            e('v_mul_f32 v%d, v%d, v%d' % (16 + b, 16 + b, 22 + b))
        for b in range(2):
            for c in range(16):
                e('v_readlane_b32 s%d, v%d, %d' % (64 + 16 * b + c, 16 + b, c))
        for k in range(4):
            e('v_mov_b32 v%d, 0' % (24 + k))
        for c in range(16):
            e('v_accvgpr_read_b32 v28, a%d' % (A_WUV + c))
            self.unpack(29, 30, 28)
            for b in range(2):
                e('v_fma_f32 v%d, s%d, v29, v%d' % (24 + 2 * b, 64 + 16 * b + c, 24 + 2 * b))
                e('v_fma_f32 v%d, s%d, v30, v%d' % (25 + 2 * b, 64 + 16 * b + c, 25 + 2 * b))
        self.clamp(range(24, 28))
        self.pub_cp(24, 26, False, S_LB)

    def p5(self):
        e = self.emit
        e('s_lshl_b32 s58, %s, 6' % S_R)
        e('s_lshl_b32 s59, %s, 4' % S_W)
        e('s_add_u32 s58, s58, s59')
        e('s_add_u32 s58, s58, %s' % S_LB)
        e('s_add_u32 s58, s58, %d' % CP)
        e('v_and_b32 v9, 31, v1')
        e('v_lshlrev_b32 v9, 15, v9')
        e('v_lshrrev_b32 v10, 5, v1')
        e('v_lshlrev_b32 v10, 14, v10')
        e('v_add_u32 v9, v9, v10')
        self.poll(lambda: self.ld(16, 4, 9, 'WS', 's58', 0, True), range(16, 20), 8)
        self.dpp_reduce('v_add_f32', [16, 17, 18, 19], full=False)
        for k in range(4):
            self.bf16r(16 + k, 16 + k)
        e('v_lshrrev_b32 v9, 5, v1')
        e('v_lshlrev_b32 v9, 6, v9')
        e('s_lshl_b32 s58, %s, 4' % S_W)
        e('v_add_u32 v9, s58, v9')
        e('s_mov_b32 s60, 0x80000000')
        e('s_mov_b32 s61, 0x80000000')
        e('s_mov_b64 exec, s[60:61]')
        e('ds_write_b128 v9, v[16:19] offset:%d' % L_CT)
        e('s_mov_b64 exec, -1')
        e('s_waitcnt lgkmcnt(0)')
        e('s_barrier')
        e('v_mov_b32 v9, 0')
        for q in range(8):
            e('ds_read_b128 v[%d:%d], v9 offset:%d' % (32 + 4 * q, 35 + 4 * q, L_CT + 16 * q))
        for k in range(4):
            e('v_mov_b32 v%d, 0' % (24 + k))
        e('s_waitcnt lgkmcnt(0)')
        for d in range(16):
            e('v_accvgpr_read_b32 v28, a%d' % (A_WO + d))
            self.unpack(29, 30, 28)
            for b in range(2):
                e('v_fmac_f32 v%d, v%d, v29' % (24 + 2 * b, 32 + 16 * b + d))
                e('v_fmac_f32 v%d, v%d, v30' % (25 + 2 * b, 32 + 16 * b + d))
        self.clamp(range(24, 28))
        self.pub_po(PO, 24, 26, False, S_LB)

    def p6(self, src, dst, npart, lds):
        e = self.emit
        e('s_lshl_b32 s58, %s, 5' % S_X)
        e('s_lshl_b32 s59, %s, 3' % S_W)
        e('s_add_u32 s58, s58, s59')
        e('s_lshl_b32 s58, s58, 12')
        e('s_lshl_b32 s59, %s, 7' % S_J)
        e('s_add_u32 s58, s58, s59')
        e('s_add_u32 s58, s58, %s' % S_LB)
        e('s_add_u32 s58, s58, %d' % src)
        e('v_lshrrev_b32 v9, 3, v1')
        e('v_lshlrev_b32 v9, 12, v9')
        e('v_and_b32 v10, 7, v1')
        e('v_lshlrev_b32 v10, 4, v10')
        e('v_add_u32 v9, v9, v10')
        if npart < 32:
            for k in range(4):
                e('v_mov_b32 v%d, 0' % (16 + k))
            e('v_lshrrev_b32 v10, 3, v0')
            e('v_cmp_gt_u32 s[60:61], %d, v10' % npart)

        def loads():
            if npart < 32:
                e('s_mov_b64 exec, s[60:61]')
            self.ld(16, 4, 9, 'WS', 's58', 0, True)
            if npart < 32:
                e('s_mov_b64 exec, -1')
        self.poll(loads, range(16, 20), 8)
        for k in range(4):
            e('v_add_f32_dpp v%d, v%d, v%d row_ror:8 row_mask:0xf bank_mask:0xf' % (16 + k, 16 + k, 16 + k))
        for k in range(4):
            self.xswap('v_add_f32', 16 + k, 20 + k, 16)
        for k in range(4):
            self.xswap('v_add_f32', 16 + k, 20 + k, 32)
        e('s_lshl_b32 s58, %s, 7' % S_W)
        e('v_and_b32 v9, 7, v1')
        e('v_lshlrev_b32 v9, 4, v9')
        e('v_add_u32 v10, s58, v9')
        e('ds_write_b128 v10, v[16:19] offset:%d' % lds)
        e('s_waitcnt lgkmcnt(0)')
        e('s_barrier')
        for w in range(4):
            e('ds_read_b128 v[%d:%d], v9 offset:%d' % (16 + 4 * w, 19 + 4 * w, lds + 128 * w))
        e('s_waitcnt lgkmcnt(0)')
        for k in range(4):
            e('v_add_f32 v%d, v%d, v%d' % (16 + k, 16 + k, 20 + k))
            e('v_add_f32 v%d, v%d, v%d' % (24 + k, 24 + k, 28 + k))
        for k in range(4):
            e('v_add_f32 v%d, v%d, v%d' % (16 + k, 16 + k, 24 + k))
        self.clamp(range(16, 20))
        self.pub_xp(dst, 16, S_LB)

    def p7(self):
        e = self.emit
        skip = self.label('LS')
        e('s_cmp_ge_u32 %s, 28' % S_J)
        e('s_cbranch_scc1 %s' % skip)
        e('s_lshl_b32 s58, %s, 8' % S_W)
        e('v_add_u32 v8, s58, v2')
        for rr in range(2):
            for b in range(2):
                e('ds_read_b32 v%d, v8 offset:%d' % (16 + 2 * rr + b, L_XN + b * 2048 + rr * 1024))
        for k in range(32):
            e('v_mov_b32 v%d, 0' % (32 + k))
        e('s_waitcnt lgkmcnt(0)')
        for mat, ab in enumerate((A_W1, A_W3)):
            for rr in range(2):
                for d in range(4):
                    e('v_accvgpr_read_b32 v24, a%d' % (ab + 4 * rr + d))
                    self.unpack(25, 26, 24)
                    for b in range(2):
                        a = 32 + 16 * mat + 8 * b + 2 * d
                        e('v_fmac_f32 v%d, v%d, v25' % (a, 16 + 2 * rr + b))
                        e('v_fmac_f32 v%d, v%d, v26' % (a + 1, 16 + 2 * rr + b))
        for k in range(16):
            e('v_permlane32_swap_b32 v%d, v%d' % (32 + k, 48 + k))
            e('v_add_f32 v%d, v%d, v%d' % (32 + k, 32 + k, 48 + k))
        for k in range(8):
            e('v_permlane16_swap_b32 v%d, v%d' % (32 + k, 40 + k))
            e('v_add_f32 v%d, v%d, v%d' % (32 + k, 32 + k, 40 + k))
        self.row_reduce('v_add_f32', list(range(32, 40)))
        e('v_lshrrev_b32 v9, 4, v1')
        e('v_lshlrev_b32 v9, 5, v9')
        e('s_lshl_b32 s58, %s, 7' % S_W)
        e('v_add_u32 v9, s58, v9')
        e('s_mov_b32 s60, 0x80008000')
        e('s_mov_b32 s61, 0x80008000')
        e('s_mov_b64 exec, s[60:61]')
        e('ds_write_b128 v9, v[32:35] offset:%d' % L_FR)
        e('ds_write_b128 v9, v[36:39] offset:%d' % (L_FR + 16))
        e('s_mov_b64 exec, -1')
        e('s_waitcnt lgkmcnt(0)')
        e('s_barrier')
        e('v_and_b32 v9, 15, v1')
        e('v_lshlrev_b32 v9, 2, v9')
        for w in range(4):
            e('ds_read_b32 v%d, v9 offset:%d' % (16 + w, L_FR + 128 * w))
            e('ds_read_b32 v%d, v9 offset:%d' % (20 + w, L_FR + 128 * w + 64))
        e('s_waitcnt lgkmcnt(0)')
        e('v_add_f32 v16, v16, v17')
        e('v_add_f32 v18, v18, v19')
        e('v_add_f32 v20, v20, v21')
        e('v_add_f32 v22, v22, v23')
        e('v_add_f32 v16, v16, v18')
        e('v_add_f32 v20, v20, v22')
        self.bf16r(16, 16)
        self.bf16r(20, 20)
        e('v_mul_f32 v17, %s, v16' % f32hex(-1.4426950408889634))
        e('v_exp_f32 v17, v17')
        e('v_add_f32 v17, 1.0, v17')
        e('v_rcp_f32 v17, v17')
        e('v_mul_f32 v17, v17, v16')
        self.bf16r(17, 17)
        e('v_mul_f32 v17, v17, v20')
        self.bf16r(17, 17)
        for k in range(16):
            e('v_readlane_b32 s%d, v17, %d' % (64 + k, k))
        for k in range(4):
            e('v_mov_b32 v%d, 0' % (24 + k))
        for f in range(8):
            e('v_accvgpr_read_b32 v28, a%d' % (A_W2 + f))
            self.unpack(29, 30, 28)
            for b in range(2):
                e('v_fma_f32 v%d, s%d, v29, v%d' % (24 + 2 * b, 64 + 8 * b + f, 24 + 2 * b))
                e('v_fma_f32 v%d, s%d, v30, v%d' % (25 + 2 * b, 64 + 8 * b + f, 25 + 2 * b))
        self.clamp(range(24, 28))
        self.pub_po(PO2, 24, 26, False, S_LB)
        done = self.label('LS')
        e('s_branch %s' % done)
        self.place(skip)
        e('s_barrier')
        self.nbar -= 1
        self.place(done)

    def unpack_x0(self):
        self.unpack(4, 5, 6)
        self.unpack(6, 7, 7)

    def a_phases(self, L):
        self.layernorm()
        self.p1()
        self.pub_qp(16, False, S_LB)
        self.emit('s_barrier')
        self.phase_end()
        self.emit('s_barrier')
        self.p3(L == 0)
        self.phase_end()
        self.p3b()
        self.emit('s_barrier')
        self.phase_end()

    def b_phases(self, L):
        self.p4()
        self.phase_end()
        self.p5()
        self.phase_end()
        self.p6(PO, XP, 32, L_R6)
        self.emit('s_barrier')
        self.phase_end()

    def c_phases(self, L):
        self.gather_x(XP, S_LB)
        self.layernorm(L_XN2, L_XL2)
        self.p7()
        self.phase_end()
        self.p6(PO2, XP2, 28, L_R8)
        self.phase_end()

    def count_bar(self, fn):
        g = G(None, False)
        fn(g)
        return g.nbar

    def if_l0(self, fn):
        skip = self.label('LI')
        self.emit('s_cmp_lg_u32 s97, 0')
        self.emit('s_cbranch_scc1 %s' % skip)
        fn()
        self.place(skip)

    def build(self):
        e = self.emit
        nA = self.count_bar(lambda g: g.a_phases(1))
        nB = self.count_bar(lambda g: g.b_phases(1))
        nC = self.count_bar(lambda g: g.c_phases(1))
        self.prologue()
        self.prologueA()
        self.unpack_x0()
        self.place('L_ALOOP')
        self.a_phases(0)

        def ffn():
            self.bulk2(4)
            self.bulk2(5)
        self.if_l0(ffn)
        self.idle_barriers(nB)
        self.c_phases(0)
        e('s_cmp_lg_u32 %s, 0' % S_X)
        e('s_cselect_b32 s58, s97, 0')
        e('s_cmp_lg_u32 s58, 0')
        e('s_cbranch_scc1 L_END')
        self.gather_x(XP2, S_LB)
        e('s_cmp_lg_u32 s97, 0')
        e('s_cbranch_scc1 L_FINAL')
        e('s_mov_b32 %s, 0x%x' % (S_LB, LAYER))
        e('s_mov_b32 s97, 1')
        e('s_branch L_ALOOP')
        self.place('L_FINAL')
        e('s_cmp_lg_u32 %s, 0' % S_R)
        e('s_cbranch_scc1 L_END')
        e('v_cvt_pk_bf16_f32 v16, v4, v5')
        e('v_cvt_pk_bf16_f32 v17, v6, v7')
        e('v_lshlrev_b32 v8, 3, v0')
        self.st(16, 2, 8, 'OUT')
        e('s_branch L_END')
        self.place('L_GROUPB')
        self.hist = []
        self.prologueB()
        self.place('L_BLOOP')
        self.idle_barriers(4)
        self.if_l0(self.flagwait)
        self.idle_barriers(1)
        self.p2()
        self.phase_end()
        self.p2b()
        self.idle_barriers(1)
        for part in range(4):
            self.idle_barriers(1)
            self.if_l0(lambda: self.bulk2(part))
        self.idle_barriers(nA - 6 - 4)
        self.b_phases(0)
        e('s_cmp_lg_u32 s97, 0')
        e('s_cbranch_scc1 L_END')
        for i in range(16, 20):
            e('v_mov_b32 v%d, -1' % i)
        e('s_mov_b32 %s, 0x%x' % (S_LB, LAYER))
        self.clears(S_LB, True, True)
        e('s_waitcnt vmcnt(0)')
        self.idle_barriers(nC)
        e('s_mov_b32 s97, 1')
        e('s_branch L_BLOOP')
        self.place('L_END')
        e('s_endpgm')


def main():
    stop = None
    outp = 'interleave_layers__compressed_kv_cla__glu_gated_swiglu__decode.s'
    for a in sys.argv[1:]:
        if a.startswith('stop='):
            stop = int(a[5:])
        if a.startswith('out='):
            outp = a[4:]
    prof = any(a == 'prof' for a in sys.argv[1:])
    g = G(stop, prof)
    g.build()
    if prof:
        open(outp + '.ts', 'w').write('\n'.join(g.tsnames))
    ref = open('interleave_layers__compressed_kv_cla__glu_gated_swiglu__decode.s.ref').read()
    head = []
    for l in ref.split('\n'):
        if l.startswith('; @launch'):
            break
        head.append(l)
    s = '\n'.join(head) + '\n'
    s += '; @launch grid=(256,1,1) block=(512,1,1) lds=%d\n' % LDS_BYTES
    s += '.amdgcn_target "amdgcn-amd-amdhsa--gfx950"\n.text\n.globl %s\n.p2align 8\n.type %s,@function\n%s:\n' % (KNAME, KNAME, KNAME)
    s += g.text()
    s += '''.section .rodata,"a"
.p2align 6
.amdhsa_kernel %s
  .amdhsa_next_free_vgpr 256
  .amdhsa_next_free_sgpr 102
  .amdhsa_accum_offset 176
  .amdhsa_group_segment_fixed_size 0
  .amdhsa_kernarg_size 104
  .amdhsa_user_sgpr_count 2
  .amdhsa_user_sgpr_kernarg_segment_ptr 1
  .amdhsa_system_sgpr_workgroup_id_x 1
.end_amdhsa_kernel
''' % KNAME
    open(outp, 'w').write(s)


if __name__ == '__main__':
    main()
```
